```python
import torch

def _softmax(x, axis=-1):
    return torch.softmax(x, dim=axis)

def _gelu(x):
    return torch.nn.functional.gelu(x, approximate='tanh')

def _silu(x):
    return torch.nn.functional.silu(x)

def _sigmoid(x):
    return torch.sigmoid(x)

def _layernorm(x, axis=-1, eps=1e-05):
    m = x.mean(dim=axis, keepdim=True)
    v = x.var(dim=axis, keepdim=True, unbiased=False)
    return (x - m) / torch.sqrt(v + eps)

def _scatter_add(tgt, idx, src, axis=0):
    return tgt.clone().index_add_(axis, idx, src)

def _segment_sum(src, seg, n):
    out = torch.zeros((n,) + src.shape[1:], dtype=src.dtype)
    return out.index_add_(0, seg, src)

def _pad(x, pw):
    flat = tuple((v for pair in reversed(pw) for v in pair))
    return torch.nn.functional.pad(x, flat)
kernel_name = 'gated_mix__sliding_block__mixer_gmlp__prompt'

def setup_inputs():

    _w = lambda a: (lambda t: t.to(torch.bfloat16) if t.is_floating_point() else t)(torch.as_tensor(a))

    def _A_setup():
        B, S, D = (1, 2048, 512)
        return {'x': _w((lambda *s: torch.randn(*s, dtype=torch.bfloat16) * 0.05)(B, S, D)), 'wqkv': _w((lambda *s: torch.randn(*s, dtype=torch.bfloat16) * 1.6)(D, 3 * D)), 'wo': _w((lambda *s: torch.randn(*s, dtype=torch.bfloat16) * 0.05)(D, D))}
    _A_in = _A_setup()

    def _B_setup():
        B, S, D, F = (1, 2048, 512, 1792)
        Fh = F // 2
        return {'x': _w((lambda *s: torch.randn(*s, dtype=torch.bfloat16) * 0.05)(B, S, D)), 'w_in': _w((lambda *s: torch.randn(*s, dtype=torch.bfloat16) * 0.8)(D, 2 * Fh)), 'w_sp': _w(0.01 * (lambda *s: torch.randn(*s, dtype=torch.bfloat16) * 0.8)(S, S)), 'b_sp': _w(1.0 + 0.01 * (lambda *s: torch.randn(*s, dtype=torch.bfloat16) * 0.1)(S)), 'w_out': _w((lambda *s: torch.randn(*s, dtype=torch.bfloat16) * 0.1)(Fh, D))}
    _B_in = _B_setup()
    return {'A_x': _A_in['x'], 'A_wqkv': _A_in['wqkv'], 'A_wo': _A_in['wo'], 'B_x': _B_in['x'], 'B_w_in': _B_in['w_in'], 'B_w_sp': _B_in['w_sp'], 'B_b_sp': _B_in['b_sp'], 'B_w_out': _B_in['w_out'], 'gate_w': _w((lambda *s: torch.randn(*s, dtype=torch.bfloat16) * 0.05)(512) * 16.0)}

def reference(A_x, A_wqkv, A_wo, B_x, B_w_in, B_w_sp, B_b_sp, B_w_out, gate_w):

    def _A_ref(x, wqkv, wo):
        B, S, D = x.shape
        H = 32
        Dh = D // H
        W = 256
        qkv = (lambda x, *d: x.permute(*d))((x @ wqkv).reshape(B, S, 3, H, Dh), 2, 0, 3, 1, 4)
        q, k, v = (qkv[0], qkv[1], qkv[2])
        scores = torch.einsum('bhqd,bhkd->bhqk', q, k) * Dh ** (-0.5)
        idx = torch.arange(S)
        mask = (idx[:, None] - idx[None, :] >= 0) & (idx[:, None] - idx[None, :] < W)
        scores = torch.where(mask[None, None], scores, -1000000000.0)
        p = _softmax(scores, axis=-1)
        o = torch.einsum('bhqk,bhkd->bhqd', p, v)
        return (lambda x, *d: x.permute(*d))(o, 0, 2, 1, 3).reshape(B, S, D) @ wo

    def _B_ref(x, w_in, w_sp, b_sp, w_out):
        B, S, D = x.shape
        F = w_in.shape[-1]
        Fh = F // 2
        z = _gelu(torch.einsum('bsd,df->bsf', x, w_in))
        z1 = z[..., :Fh].clone()
        z2 = _layernorm(z[..., Fh:], axis=-1)
        g = torch.einsum('ts,bsf->btf', w_sp, z2) + b_sp[None, :, None]
        return torch.einsum('bsf,fd->bsd', z1 * g, w_out)
    x = A_x
    g = _sigmoid((x * gate_w).sum(-1, keepdims=True))
    a = _A_ref(x, A_wqkv, A_wo)
    b = _B_ref(x, B_w_in, B_w_sp, B_b_sp, B_w_out)
    return g * a + (1 - g) * b
```

```python
import re

REG_RE = re.compile(r'^(v|s|a)(\d+)$')
RNG_RE = re.compile(r'^(v|s|a)\[(\d+):(\d+)\]$')

def regs_of(tok):
    tok = tok.strip()
    neg = tok.startswith('-')
    if neg: tok = tok[1:]
    if tok.startswith('abs(') and tok.endswith(')'): tok = tok[4:-1]
    if tok.startswith('|') and tok.endswith('|'): tok = tok[1:-1]
    m = REG_RE.match(tok)
    if m: return [(m.group(1), int(m.group(2)))]
    m = RNG_RE.match(tok)
    if m: return [(m.group(1), i) for i in range(int(m.group(2)), int(m.group(3)) + 1)]
    if tok == 'vcc': return [('s', 'vcc')]
    if tok == 'exec': return [('s', 'exec')]
    if tok == 'm0': return [('s', 'm0')]
    return []

TRANS = ('v_exp_f32', 'v_log_f32', 'v_rcp_f32', 'v_rsq_f32', 'v_sqrt_f32', 'v_sin_f32', 'v_cos_f32')

class Ins:
    __slots__ = ('text', 'op', 'ops', 'mods', 'w', 'r', 'kind', 'label', 'target', 'passes', 'srcC', 'srcAB', 'states')
    def __init__(self, text):
        self.text = text
        self.label = None; self.target = None; self.passes = 0; self.srcC = []; self.srcAB = []
        self.w = set(); self.r = set(); self.states = 1
        t = text.split(';')[0].strip()
        if t.endswith(':'):
            self.kind = 'label'; self.label = t[:-1]; self.op = ''; self.states = 0; self.ops = []; self.mods = ''
            return
        if t == '' or t.startswith('.'):
            self.kind = 'dir'; self.op = ''; self.states = 0; self.ops = []; self.mods = ''
            return
        parts = t.split(None, 1)
        op = parts[0]; self.op = op
        rest = parts[1] if len(parts) > 1 else ''
        ops = []; cur = ''; d = 0
        for ch in rest:
            if ch in '[(': d += 1
            if ch in '])': d -= 1
            if ch == ',' and d == 0: ops.append(cur.strip()); cur = ''
            else: cur += ch
        if cur.strip(): ops.append(cur.strip())
        mods = ''
        if ops:
            last = ops[-1].split(None, 1)
            if len(last) > 1 and not last[0].endswith(('(',)):
                ops[-1] = last[0]; mods = last[1]
        self.ops = ops; self.mods = mods
        base = op
        for suf in ('_e32', '_e64', '_dpp', '_sdwa'):
            if base.endswith(suf): base = base[:-len(suf)]
        R = lambda i: regs_of(ops[i]) if i < len(ops) else []
        allsrc = lambda a: [x for i in range(a, len(ops)) for x in R(i)]
        if op.startswith('v_mfma'):
            self.kind = 'mfma'
            self.passes = 8 if '32x32' in op else 4
            self.w = set(R(0)); self.srcAB = R(1) + R(2); self.srcC = R(3)
            self.r = set(self.srcAB + self.srcC)
        elif op.startswith('v_'):
            self.kind = 'valu'
            if base.startswith('v_cmp'):
                self.w = set(R(0)); self.r = set(allsrc(1))
            elif base.startswith('v_permlane') and 'swap' in base:
                self.w = set(R(0) + R(1)); self.r = set(R(0) + R(1))
            elif base in ('v_add_co_u32', 'v_sub_co_u32', 'v_addc_co_u32', 'v_subb_co_u32'):
                self.w = set(R(0) + R(1)); self.r = set(allsrc(2))
            else:
                self.w = set(R(0)); self.r = set(allsrc(1))
                if base in ('v_fmac_f32', 'v_mac_f32', 'v_dot2c_f32_bf16', 'v_fmamk_f32x') or base.startswith('v_writelane'):
                    self.r |= set(R(0))
                if base == 'v_cndmask_b32' and len(ops) == 3:
                    self.r.add(('s', 'vcc'))
                if '_dpp' in op or 'row_' in mods or 'quad_perm' in mods:
                    if 'bound_ctrl' not in mods: self.r |= set(R(0))
        elif op.startswith('ds_'):
            self.kind = 'ds'
            if op.startswith('ds_read') or op.startswith('ds_bpermute') or op.startswith('ds_swizzle') or op.startswith('ds_permute'):
                self.w = set(R(0)); self.r = set(allsrc(1))
            else:
                self.r = set(allsrc(0))
        elif op.startswith('buffer_') or op.startswith('global_'):
            self.kind = 'vmem'
            lds = re.search(r'\blds\b', mods) is not None
            if op.startswith('buffer_load') and not lds:
                self.w = set(R(0)); self.r = set(allsrc(1))
            elif op.startswith('buffer_atomic') and 'sc0' in mods:
                self.w = set(R(0)); self.r = set(allsrc(0))
            else:
                self.r = set(allsrc(0))
                if lds: self.r.add(('s', 'm0'))
        elif op.startswith('s_'):
            self.kind = 'salu'
            if op in ('s_nop',):
                self.states = int(ops[0], 0) + 1
            elif op.startswith('s_cbranch') or op == 's_branch':
                self.target = ops[0]; self.kind = 'branch'
            elif op.startswith('s_cmp') or op in ('s_waitcnt', 's_barrier', 's_endpgm', 's_setprio', 's_sleep'):
                self.r = set(allsrc(0))
            elif op.startswith('s_load') or op.startswith('s_memtime') or op.startswith('s_memrealtime'):
                self.kind = 'smem'; self.w = set(R(0)); self.r = set(allsrc(1))
            else:
                self.w = set(R(0)); self.r = set(allsrc(1))
                if 'saveexec' in op: self.w.add(('s', 'exec'))
        else:
            raise ValueError('unknown instruction: ' + text)

    def is_trans(self):
        b = self.op.replace('_e32', '').replace('_e64', '')
        return b in TRANS
    def is_dpp(self):
        return self.kind == 'valu' and ('_dpp' in self.op or 'row_' in self.mods or 'quad_perm' in self.mods)
    def is_lds_dma(self):
        return self.kind == 'vmem' and re.search(r'\blds\b', self.mods) is not None
    def is_wide_store(self):
        return self.kind == 'vmem' and ('store_dwordx4' in self.op or 'store_dwordx3' in self.op)

def vg(s):
    return {x for x in s if x[0] in ('v', 'a')}
def sg(s):
    return {x for x in s if x[0] == 's'}

def required_wait(p, c):
    need = 0
    if p.kind == 'valu':
        pw = vg(p.w)
        if pw:
            if c.kind == 'mfma' and pw & c.r: need = max(need, 2)
            if c.kind == 'valu':
                if 'permlane' in c.op and pw & c.r: need = max(need, 2)
                if (c.op.startswith('v_readfirstlane') or c.op.startswith('v_readlane')) and pw & c.r: need = max(need, 1)
                if c.is_dpp() and pw & c.r: need = max(need, 2)
                if p.is_trans() and not c.is_trans() and pw & c.r: need = max(need, 1)
            if p.is_trans() and c.kind in ('ds', 'vmem') and pw & c.r: need = max(need, 1)
        ps = sg(p.w)
        if ps:
            if c.kind == 'vmem' and ps & c.r: need = max(need, 5)
            if c.kind == 'valu' and ps & c.r:
                need = max(need, 4 if (c.op.startswith('v_readlane') or c.op.startswith('v_writelane')) else 2)
            if c.kind in ('salu', 'branch', 'smem') and (ps & c.r): need = max(need, 1)
            if c.kind == 'branch' and c.op in ('s_cbranch_vccz', 's_cbranch_vccnz') and ('s', 'vcc') in ps: need = max(need, 1)
    elif p.kind == 'mfma':
        big = p.passes == 8
        if c.kind == 'mfma':
            cC = set(c.srcC)
            if cC & p.w:
                if cC == p.w and c.passes == p.passes: pass
                else: need = max(need, 10 if big else 6)
            if set(c.srcAB) & p.w: need = max(need, 12 if big else 8)
        elif c.kind == 'valu':
            if (c.r | c.w) & p.w: need = max(need, 12 if big else 8)
            if c.w & set(p.srcC): need = max(need, 7 if big else 3)
        elif c.kind in ('ds', 'vmem'):
            if (c.r | c.w) & p.w: need = max(need, 12 if big else 8)
            if c.w & set(p.srcC): need = max(need, 7 if big else 3)
    elif p.kind == 'salu':
        if ('s', 'm0') in p.w and c.is_lds_dma(): need = max(need, 1)
    elif p.kind == 'vmem':
        if p.is_wide_store():
            data = set(regs_of(p.ops[0]))
            if c.w & data: need = max(need, 2 if c.kind == 'valu' else 1)
    return need

MAXLOOK = 14

def fix_hazards(ins_list):
    changed = True
    total = 0
    while changed:
        changed = False
        labels = {x.label: i for i, x in enumerate(ins_list) if x.kind == 'label'}
        br = {}
        for i, x in enumerate(ins_list):
            if x.kind == 'branch' and x.target in labels:
                br.setdefault(labels[x.target], []).append(i)
        for i, c in enumerate(ins_list):
            if c.kind in ('label', 'dir'): continue
            worst = 0
            stack = [(i - 1, 0)]
            seen = {}
            while stack:
                j, d = stack.pop()
                while j >= 0 and d < MAXLOOK:
                    if seen.get(j, 99) <= d: break
                    seen[j] = d
                    p = ins_list[j]
                    if p.kind == 'label':
                        for b in br.get(j, []):
                            stack.append((b, d))
                        k = j - 1
                        while k >= 0 and ins_list[k].kind in ('label', 'dir'):
                            if ins_list[k].kind == 'label':
                                for b in br.get(k, []): stack.append((b, d))
                            k -= 1
                        if k >= 0 and ins_list[k].op in ('s_branch', 's_endpgm'): break
                        j -= 1
                        continue
                    if p.kind == 'dir':
                        j -= 1; continue
                    need = required_wait(p, c)
                    if need > d: worst = max(worst, need - d)
                    d += p.states
                    j -= 1
            if worst > 0:
                n = worst
                new = []
                while n > 0:
                    k = min(n, 16)
                    new.append(Ins(f's_nop {k-1}')); n -= k
                ins_list[i:i] = new
                total += worst
                changed = True
                break_outer = True
                break
    return total

def fix_hazards_fast(ins_list):
    out = []
    labels_pos = {}
    br = {}
    for x in ins_list:
        if x.kind == 'branch': br.setdefault(x.target, []).append(x)
    idx_of = {}
    total = 0
    pending_back = []
    for c in ins_list:
        if c.kind in ('label', 'dir'):
            out.append(c); idx_of[id(c)] = len(out) - 1
            continue
        worst = 0
        stack = [(len(out) - 1, 0)]
        seen = {}
        while stack:
            j, d = stack.pop()
            while j >= 0 and d < MAXLOOK:
                if seen.get(j, 99) <= d: break
                seen[j] = d
                p = out[j]
                if p.kind == 'label':
                    for b in br.get(p.label, []):
                        if id(b) in idx_of: stack.append((idx_of[id(b)], d))
                    k = j - 1
                    while k >= 0 and out[k].kind == 'dir': k -= 1
                    if k >= 0 and out[k].op in ('s_branch', 's_endpgm'): break
                    j -= 1
                    continue
                if p.kind == 'dir':
                    j -= 1; continue
                need = required_wait(p, c)
                if need > d: worst = max(worst, need - d)
                d += p.states
                if p.op in ('s_branch', 's_endpgm') and d > 0 and (j != len(out) - 1) and False:
                    break
                j -= 1
        n = worst
        while n > 0:
            k = min(n, 16)
            out.append(Ins(f's_nop {k-1}')); n -= k
        total += worst
        out.append(c); idx_of[id(c)] = len(out) - 1
    ins_list[:] = out
    total += fix_hazards(ins_list)
    return total

class Stream:
    def __init__(self):
        self.ins = []
        self.vm = 0
        self.lg = 0
        self.vm_waited = 0
        self.lg_waited = 0
    def I(self, text):
        x = Ins(text)
        self.ins.append(x)
        if x.kind == 'vmem' and not x.op.startswith(('buffer_wbl2', 'buffer_inv')): self.vm += 1
        if x.kind == 'ds': self.lg += 1
        if x.op == 's_waitcnt':
            m = re.search(r'vmcnt\((\d+)\)', text)
            if m: self.vm_waited = max(self.vm_waited, self.vm - int(m.group(1)))
            m = re.search(r'lgkmcnt\((\d+)\)', text)
            if m: self.lg_waited = max(self.lg_waited, self.lg - int(m.group(1)))
        return x
    def L(self, name): self.ins.append(Ins(name + ':'))
    def C(self, text): self.ins.append(Ins('; ' + text) if False else Ins('.' if False else '')) ; self.ins[-1].text = '; ' + text
    def raw(self, text):
        x = Ins(''); x.text = text; self.ins.append(x)
    def vmtok(self): return self.vm
    def lgtok(self): return self.lg
    def wait_vm(self, tok, force=False):
        if tok <= self.vm_waited and not force: return
        n = self.vm - tok
        assert n >= 0
        if n > 63: n = 63
        self.I(f's_waitcnt vmcnt({n})')
    def wait_lg(self, tok, force=False):
        if tok <= self.lg_waited and not force: return
        n = self.lg - tok
        assert n >= 0
        if n > 15: n = 15
        self.I(f's_waitcnt lgkmcnt({n})')
    def wait_both(self, vtok, ltok):
        self.wait_vm(vtok); self.wait_lg(ltok)
    def reset_vm(self):
        self.vm_waited = self.vm
    def reset_counters(self):
        self.vm_waited = self.vm; self.lg_waited = self.lg
    def extend(self, other):
        self.ins.extend(other.ins)
    def text(self):
        out = []
        for x in self.ins:
            if x.kind == 'label': out.append(x.text)
            else: out.append('  ' + x.text)
        return '\n'.join(out) + '\n'

class RegAlloc:
    def __init__(self, prefix, lo, hi):
        self.p = prefix; self.lo = lo; self.hi = hi
        self.used = [False] * (hi + 1)
        self.maxused = lo - 1
        self.names = {}
    def alloc(self, n=1, align=None, name=None):
        if align is None: align = 1 if n == 1 else (2 if n == 2 else 4 if self.p == 's' else 2)
        i = self.lo
        while True:
            i = (i + align - 1) // align * align
            if i + n - 1 > self.hi: raise RuntimeError(f'out of {self.p} registers allocating {n} ({name})')
            if not any(self.used[i:i + n]):
                for k in range(i, i + n): self.used[k] = True
                self.maxused = max(self.maxused, i + n - 1)
                return Reg(self.p, i, n)
            i += 1
    def free(self, *regs):
        for r in regs:
            for k in range(r.i, r.i + r.n):
                assert self.used[k], f'double free {r}'
                self.used[k] = False

class Reg:
    def __init__(self, p, i, n): self.p = p; self.i = i; self.n = n
    def __str__(self):
        return f'{self.p}{self.i}' if self.n == 1 else f'{self.p}[{self.i}:{self.i + self.n - 1}]'
    __repr__ = __str__
    def __getitem__(self, k):
        if isinstance(k, slice):
            a = k.start or 0; b = k.stop if k.stop is not None else self.n
            assert 0 <= a < b <= self.n, (a, b, self.n)
            return Reg(self.p, self.i + a, b - a)
        assert 0 <= k < self.n, (k, self.n)
        return Reg(self.p, self.i + k, 1)
    def sub(self, a, n): return self[a:a + n]
```

```python
import sys, math
sys.path.insert(0, 'gen')
from asmlib import *
from plan import *

KNAME = 'gated_mix__sliding_block__mixer_gmlp__prompt_kernel'

WS_NONCE = 0
F_Z2N = 0x1000
F_QKV = F_Z2N + 0x8000
F_H   = F_QKV + 0x8000
F_O   = F_H + 0x8000
STATS = 0x80000
WQ = 1 << 20
WK = 3 << 20
WVT = 5 << 20
WZ2N = 7 << 20
WH = 11 << 20
WO_ = 15 << 20
WDBG = 17 << 20
WS_SIZE = 32 << 20

BLK = 8192
NBLK = 19
MISC = 19 * BLK
M_GW = MISC
M_GATE = MISC + 1024
LDS_BYTES = 160 * 1024

QS = 0.25 * math.log2(math.e)
GC0 = -2.0 * math.sqrt(2.0 / math.pi) * math.log2(math.e)
GC1 = GC0 * 0.044715

import struct
def fbits(x): return struct.unpack('<I', struct.pack('<f', x))[0]
def fhex(x): return f'0x{fbits(x):08x}'

Z0, Y0, Q0, QE = 0, 8, 16, 24
G0 = 25
GR1, GR2, PW = 57, 58, 59
P0 = 60
NP3 = 22
KVB = 15
NINF = '0xff800000'

class Gen:
    def __init__(self, stop_after='all', debug=False, **cfg):
        self.stop = stop_after; self.debug = debug
        self.cfg = dict(ws_ahead=5, w3_ahead=8, h_poll=4, kv_step=8, att_end=29)
        self.cfg.update(cfg)
        self.pre = Stream(); self.C = Stream(); self.L = Stream()
        self.S = RegAlloc('s', 3, 101)
        self.cv = RegAlloc('v', 1, 255)
        self.lv = RegAlloc('v', 1, 255)
        self.uid = 0
    def lab(self, n):
        self.uid += 1
        return f'L_{n}_{self.uid}'

    def prologue(self):
        P = self.pre; I = P.I; S = self.S
        S.used[3:40] = [True] * 37
        I('s_cmp_ge_u32 s2, 256')
        I('s_cbranch_scc1 L_exit')
        I('s_load_dwordx16 s[16:31], s[0:1], 0')
        I('s_load_dwordx8 s[32:39], s[0:1], 64')
        I('v_lshrrev_b32 v1, 6, v0')
        I('v_and_b32 v0, 63, v0')
        I('v_readfirstlane_b32 s3, v1')
        self.s_w = Reg('s', 3, 1)
        I('s_and_b32 s4, s2, 7')
        I('s_lshr_b32 s5, s2, 3')
        I('s_lshr_b32 s6, s4, 1')
        I('s_and_b32 s7, s4, 1')
        I('s_lshr_b32 s8, s5, 2')
        I('s_lshl_b32 s9, s6, 3')
        I('s_add_u32 s8, s8, s9')
        I('s_and_b32 s9, s5, 3')
        I('s_lshl_b32 s10, s7, 2')
        I('s_add_u32 s9, s9, s10')
        I('s_and_b32 s10, s5, 15')
        I('s_lshl_b32 s11, s7, 4')
        I('s_add_u32 s10, s10, s11')
        I('s_lshr_b32 s11, s5, 4')
        I('s_lshl_b32 s12, s6, 1')
        I('s_add_u32 s11, s11, s12')
        self.s_tb = Reg('s', 8, 1); self.s_c = Reg('s', 9, 1); self.s_h = Reg('s', 10, 1); self.s_qr = Reg('s', 11, 1)
        I('s_waitcnt lgkmcnt(0)')
        I('s_load_dword s12, s[38:39], 0')
        names = ['XA', 'WQKV', 'WO', 'XB', 'WIN', 'WSP', 'BSP', 'WOUT', 'GW', 'OUT', 'DBG', 'WS']
        sizes = dict(XA=2097152, WQKV=1572864, WO=524288, XB=2097152, WIN=1835008, WSP=8388608, BSP=4096,
                     WOUT=917504, GW=1024, OUT=2097152, WS=WS_SIZE)
        self.srd = {}
        for i, n in enumerate(names):
            if n == 'DBG': continue
            r = S.alloc(4, 4, n)
            self.srd[n] = r
            p = 16 + 2 * i
            I(f's_mov_b32 {r[0]}, s{p}')
            I(f's_and_b32 {r[1]}, s{p+1}, 0xffff')
            I(f's_mov_b32 {r[2]}, {sizes[n]}')
            I(f's_mov_b32 {r[3]}, 0x20000')
        I('s_waitcnt lgkmcnt(0)')
        I('s_mul_i32 s12, s12, 0x9E3779B1')
        I('s_add_u32 s12, s12, 0x7F4A7C15')
        self.s_nonce = Reg('s', 12, 1)
        for k in range(13, 40): S.used[k] = False
        for k in (4, 5, 6, 7): S.used[k] = False
        I('s_cmp_ge_u32 s3, 4')
        I('s_cbranch_scc1 L_entryL')

    def L_setup_p1(self):
        L = self.L; I = L.I; V = self.lv; S = self.S
        self.s_wl = S.alloc(1); self.s_wl2k = S.alloc(1); self.s_t0 = S.alloc(1); self.s_t1 = S.alloc(1)
        I(f's_sub_u32 {self.s_wl}, {self.s_w}, 4')
        I(f's_lshl_b32 {self.s_wl2k}, {self.s_wl}, 11')
        t0 = V.alloc(1); t1 = V.alloc(1); t2 = V.alloc(1); t3 = V.alloc(1)
        def xrow(pitch):
            r = V.alloc(2, 1)
            for e in range(2):
                I(f'v_lshrrev_b32 {t0}, 3, v0')
                I(f's_lshl_b32 {self.s_t0}, {self.s_wl}, 4')
                I(f's_add_u32 {self.s_t0}, {self.s_t0}, {8*e}')
                I(f'v_add_u32 {t0}, {self.s_t0}, {t0}')
                I(f'v_lshrrev_b32 {t1}, 4, v0')
                I(f'v_add_u32 {t1}, {4*e}, {t1}')
                I(f'v_and_b32 {t2}, 7, v0')
                I(f'v_xor_b32 {t1}, {t1}, {t2}')
                I(f'v_lshlrev_b32 {t1}, 4, {t1}')
                I(f's_mov_b32 {self.s_t0}, {pitch}')
                I(f'v_mul_lo_u32 {t0}, {t0}, {self.s_t0}')
                I(f'v_add_u32 {t0}, {t0}, {t1}')
                I(f'v_subrev_u32 {r[e]}, {1024*e}, {t0}')
            return r
        self.xrow = xrow
        self.v_x = xrow(1024)
        r = V.alloc(2, 1)
        for e in range(2):
            I(f'v_lshrrev_b32 {t0}, 4, v0')
            I(f'v_and_b32 {t1}, 15, v0')
            I(f'v_lshrrev_b32 {t2}, 2, {t1}')
            I(f'v_xor_b32 {t2}, {t2}, {t0}')
            I(f'v_lshlrev_b32 {t2}, 2, {t2}')
            I(f'v_and_b32 {t1}, 3, {t1}')
            I(f'v_or_b32 {t1}, {t1}, {t2}')
            I(f'v_lshlrev_b32 {t1}, 4, {t1}')
            I(f's_lshl_b32 {self.s_t0}, {self.s_wl}, 3')
            I(f's_add_u32 {self.s_t0}, {self.s_t0}, {4*e}')
            I(f'v_add_u32 {t0}, {self.s_t0}, {t0}')
            I(f's_mov_b32 {self.s_t0}, 3584')
            I(f'v_mul_lo_u32 {t0}, {t0}, {self.s_t0}')
            I(f'v_add_u32 {t0}, {t0}, {t1}')
            I(f'v_subrev_u32 {r[e]}, {1024*e}, {t0}')
        self.v_w128 = r
        def w64(pitch):
            r = V.alloc(2, 1)
            for e in range(2):
                I(f'v_lshrrev_b32 {t0}, 4, v0')
                I(f'v_and_b32 {t0}, 1, {t0}')
                I(f'v_and_b32 {t1}, 7, v0')
                I(f'v_lshrrev_b32 {t2}, 2, {t1}')
                I(f'v_xor_b32 {t2}, {t2}, {t0}')
                I(f'v_lshlrev_b32 {t2}, 2, {t2}')
                I(f'v_and_b32 {t1}, 3, {t1}')
                I(f'v_or_b32 {t1}, {t1}, {t2}')
                I(f'v_lshlrev_b32 {t1}, 4, {t1}')
                I(f'v_lshrrev_b32 {t0}, 3, v0')
                I(f's_lshl_b32 {self.s_t0}, {self.s_wl}, 4')
                I(f's_add_u32 {self.s_t0}, {self.s_t0}, {8*e}')
                I(f'v_add_u32 {t0}, {self.s_t0}, {t0}')
                I(f's_mov_b32 {self.s_t0}, {pitch}')
                I(f'v_mul_lo_u32 {t0}, {t0}, {self.s_t0}')
                I(f'v_add_u32 {t0}, {t0}, {t1}')
                I(f'v_subrev_u32 {r[e]}, {1024*e}, {t0}')
            return r
        self.w64 = w64
        self.v_wq = w64(3072)
        self.v_lin = V.alloc(1)
        I(f'v_lshlrev_b32 {self.v_lin}, 4, v0')
        self.ltmp = (t0, t1, t2, t3)
        self.s_xrow = S.alloc(1); self.s_w2 = S.alloc(1); self.s_w1 = S.alloc(1); self.s_wq = S.alloc(1)
        I(f's_lshl_b32 {self.s_xrow}, {self.s_tb}, 16')
        I(f's_lshl_b32 {self.s_w1}, {self.s_c}, 8')
        I(f's_add_u32 {self.s_w2}, {self.s_w1}, 1792')
        I(f's_lshl_b32 {self.s_wq}, {self.s_c}, 7')

    def dma2(self, blk, srd, vofs, sbase, soff, sc1=False):
        I = self.L.I
        m = ' sc1' if sc1 else ''
        I(f's_add_u32 m0, {self.s_wl2k}, {blk*BLK}')
        I(f's_add_u32 {self.s_t0}, {sbase}, {soff}')
        I(f'buffer_load_dwordx4 {vofs[0]}, {self.srd[srd]}, {self.s_t0} offen{m} lds')
        I(f'buffer_load_dwordx4 {vofs[1]}, {self.srd[srd]}, {self.s_t0} offen offset:1024{m} lds')

    def plan_p1(self):
        pl = self.pl = Planner(NBLK)
        self.it = {}
        def add(name, fu, lu, emit, **k):
            self.it[name] = pl.add(name, fu, lu, emit, **k)
        for j in range(8):
            add(f'XB{j}', Z0 + j, Y0 + j, lambda it, j=j: self.dma2(it.blk, 'XA', self.v_x, self.s_xrow, j * 128))
            for hb in range(2):
                add(f'W2_{j}_{hb}', Z0 + j, Z0 + j, lambda it, j=j, hb=hb: self.dma2(it.blk, 'WIN', self.v_w128, self.s_w2, (64 * j + 32 * hb) * 3584))
        for j in range(8):
            for hb in range(2):
                add(f'W1_{j}_{hb}', Y0 + j, Y0 + j, lambda it, j=j, hb=hb: self.dma2(it.blk, 'WIN', self.v_w128, self.s_w1, (64 * j + 32 * hb) * 3584))
        for j in range(8):
            add(f'XA{j}', Q0 + j, Q0 + j, lambda it, j=j: self.dma2(it.blk, 'XA', self.v_x, self.s_xrow, j * 128))
            for m, nm in enumerate('qkv'):
                add(f'W{nm}{j}', Q0 + j, Q0 + j, lambda it, j=j, m=m: self.dma2(it.blk, 'WQKV', self.v_wq, self.s_wq, 64 * j * 3072 + 1024 * m))
        if self.stop != 'p1':
            NW = self.cfg['ws_ahead']
            def ws(j): add(f'WS{j}', G0 + j, G0 + j, lambda it, j=j: self.dma2(it.blk, 'WSP', self.v_s, self.s_wsp, j * 128), fixed=[3 * (j % 5) + 2], group='G', earliest=Q0)
            def zz(j):
                for hb in range(2):
                    add(f'Z{j}_{hb}', G0 + j, G0 + j, lambda it, j=j, hb=hb: self.dma2(it.blk, 'WS', (self.v_lin, self.v_lin), self.s_z2n, j * 16384 + hb * 8192, sc1=True),
                        fixed=[3 * (j % 5) + hb], group='Z', earliest=QE)
            for j in range(5): ws(j)
            for j in range(5): zz(j)
            for j in range(5, 32):
                ws(j); zz(j)
            NP = self.cfg['w3_ahead']
            def w3(j):
                if j < 8: add(f'W3_{j}', P0 + j, P0 + j, lambda it, j=j: self.dma2(it.blk, 'WO', self.v_wo, self.s_w3, 64 * j * 1024), group='W3')
                else: add(f'W3_{j}', P0 + j, P0 + j, lambda it, j=j: self.dma2(it.blk, 'WOUT', self.v_wo, self.s_w3, 64 * (j - 8) * 1024), group='W3')
            for j in range(NP): w3(j)
            JH = self.cfg['h_poll']
            for j in range(NP3):
                if j < 8: add(f'A{j}', P0 + j, P0 + j, lambda it, j=j: self.dma2(it.blk, 'WS', (self.v_lin, self.v_lin), self.s_ao, j * 4 * 65536, sc1=True), group='AO', earliest=PW)
                else: add(f'A{j}', P0 + j, P0 + j, lambda it, j=j: self.dma2(it.blk, 'WS', (self.v_lin, self.v_lin), self.s_ah, (j - 8) * 8192, sc1=True), group='AH', earliest=P0 + JH)
                if j + NP < NP3: w3(j + NP)
            res = [(set(range(KVB, KVB + 4)), QE, GR2)]
            self.sched = pl.plan(-1, P0 + NP3, reserved=res)
        else:
            self.sched = pl.plan(-1, QE)

    def L_wait_for_step(self, s):
        toks = [it.tok for it in self.pl.items if it.fu <= s and it.tok is not None]
        if toks: self.L.wait_vm(max(toks))

    def L_issue(self, s):
        for it in self.sched.get(s, []):
            it.emit(it); it.tok = self.L.vmtok()

    def L_gate_step(self, j):
        L = self.L; I = L.I
        blk = self.it[f'XA{j}'].blk
        win = (blk * BLK) >> 16; base = blk * BLK - (win << 16)
        for uu in range(2):
            fa = self.g_fa[uu]; fb = self.g_fb[uu]
            I(f'ds_read_b128 {fa}, {self.v_gw} offset:{(64*j + 32*uu)*2}')
            I(f'ds_read_b128 {fb}, {self.v_gx[uu][win]} offset:{base}')
        L.wait_lg(L.lgtok())
        for uu in range(2):
            c = '0' if (j == 0 and uu == 0) else str(self.g_acc)
            I(f'v_mfma_f32_16x16x32_bf16 {self.g_acc}, {self.g_fa[uu]}, {self.g_fb[uu]}, {c}')

    def L_gate_setup(self):
        L = self.L; I = L.I; V = self.lv
        t0, t1, t2, t3 = self.ltmp
        self.g_acc = V.alloc(4, 2); self.g_fa = [V.alloc(4, 2) for _ in range(2)]; self.g_fb = [V.alloc(4, 2) for _ in range(2)]
        self.v_gw = V.alloc(1)
        I(f'v_lshrrev_b32 {t0}, 4, v0')
        I(f'v_lshlrev_b32 {t0}, 4, {t0}')
        I(f'v_add_u32 {self.v_gw}, {M_GW}, {t0}')
        self.v_gx = [[V.alloc(1) for _ in range(3)] for _ in range(2)]
        I(f'v_and_b32 {t0}, 15, v0')
        I(f's_lshl_b32 {self.s_t0}, {self.s_wl}, 4')
        I(f'v_add_u32 {t0}, {self.s_t0}, {t0}')
        I(f'v_lshrrev_b32 {t1}, 1, {t0}')
        I(f'v_and_b32 {t1}, 7, {t1}')
        I(f'v_lshrrev_b32 {t2}, 4, v0')
        for uu in range(2):
            I(f'v_add_u32 {t3}, {4*uu}, {t2}')
            I(f'v_xor_b32 {t3}, {t3}, {t1}')
            I(f'v_lshlrev_b32 {t3}, 4, {t3}')
            I(f'v_lshl_add_u32 {self.v_gx[uu][0]}, {t0}, 7, {t3}')
            I(f'v_add_u32 {self.v_gx[uu][1]}, 0x10000, {self.v_gx[uu][0]}')
            I(f'v_add_u32 {self.v_gx[uu][2]}, 0x20000, {self.v_gx[uu][0]}')

    def L_gate_finish(self):
        L = self.L; I = L.I
        t0, t1, t2, t3 = self.ltmp
        I(f'v_mul_f32 {t0}, {fhex(-math.log2(math.e))}, {self.g_acc[0]}')
        I(f'v_exp_f32 {t0}, {t0}')
        I(f'v_add_f32 {t0}, 1.0, {t0}')
        I(f'v_rcp_f32 {t0}, {t0}')
        I(f'v_and_b32 {t1}, 15, v0')
        I(f's_lshl_b32 {self.s_t0}, {self.s_wl}, 4')
        I(f'v_add_u32 {t1}, {self.s_t0}, {t1}')
        I(f'v_lshlrev_b32 {t1}, 2, {t1}')
        I(f'v_add_u32 {t1}, {M_GATE}, {t1}')
        I(f'ds_write_b32 {t1}, {t0}')

    def L_p1(self):
        L = self.L; I = L.I
        L.L('L_entryL')
        self.L_setup_p1()
        I(f's_cmp_eq_u32 {self.s_c}, 7')
        I('s_cbranch_scc1 L_L_c7')
        self.L_issue(-1)
        I(f's_mov_b32 m0, {M_GW}')
        I(f'buffer_load_dwordx4 {self.v_lin}, {self.srd["GW"]}, 0 offen lds')
        self.L_gate_setup()
        self.L_wait_for_step(0)
        I('s_barrier')
        for s in range(0, Q0 - 1):
            self.L_issue(s)
            self.L_wait_for_step(s + 1)
            I('s_barrier')
        s = Q0 - 1
        self.L_issue(s)
        I('s_branch L_L_merge')
        L.L('L_L_c7')
        save_vm = (L.vm, L.vm_waited)
        I(f's_mov_b32 m0, {M_GW}')
        I(f'buffer_load_dwordx4 {self.v_lin}, {self.srd["GW"]}, 0 offen lds')
        self.L_gate_setup_again()
        for st in range(-1, Q0):
            for it in self.sched.get(st, []):
                if it.fu >= Q0: it.emit(it)
        L.vm, L.vm_waited = save_vm
        L.L('L_L_merge')
        self.L_wait_for_step(Q0)
        I('s_barrier')
        if self.stop != 'p1': self.L_setup_g()
        for s in range(Q0, QE):
            self.L_issue(s)
            self.L_gate_step(s - Q0)
            if s == QE - 1: self.L_gate_finish_pending = True
            self.L_wait_for_step(s + 1)
            L.wait_lg(L.lgtok())
            I('s_barrier')
        if self.stop == 'p1':
            self.L_issue(QE)
            self.L_gate_finish()
            L.wait_lg(L.lgtok())
            I('s_barrier')
            return
        self.L_gate_finish()
        skip = self.lab('qe')
        I(f's_cmp_eq_u32 {self.s_c}, 7')
        I(f's_cbranch_scc1 {skip}')
        polled = False
        for it in self.sched.get(QE, []):
            if it.group == 'Z' and not polled:
                self.L_poll(self.poll_addr_z2n); polled = True
            it.emit(it); it.tok = L.vmtok()
        for it in self.sched.get(QE, []): assert it.group in ('G', 'Z')
        assert polled
        self.L_wait_for_step(QE + 1)
        L.L(skip)
        L.wait_lg(L.lgtok())
        I('s_barrier')

    def L_poll(self, setup, St=None, tmp=None, stmp=None):
        St = St or self.L; I = St.I
        t0, t1 = (tmp or self.ltmp)[:2]
        s_cnt = stmp or self.s_t1
        setup(St, t0, t1)
        lab = self.lab('poll'); done = self.lab('polld')
        I(f's_mov_b32 {s_cnt}, 0')
        St.L(lab)
        I(f'buffer_load_dword {t1}, {t0}, {self.srd["WS"]}, 0 offen sc1')
        I('s_waitcnt vmcnt(0)')
        I(f'v_cmp_ne_u32 vcc, {self.s_nonce}, {t1}')
        I('s_cmp_eq_u64 vcc, 0')
        I(f's_cbranch_scc1 {done}')
        I(f's_add_u32 {s_cnt}, {s_cnt}, 1')
        I(f's_cmp_lt_u32 {s_cnt}, 20000')
        I(f's_cbranch_scc1 {lab}')
        St.L(done)
        St.vm -= 0
        St.reset_vm()

    def poll_addr_z2n(self, St, t0, t1):
        I = St.I
        I(f'v_and_b32 {t0}, 31, v0')
        I(f'v_lshlrev_b32 {t0}, 3, {t0}')
        I(f'v_add_u32 {t0}, {self.s_c}, {t0}')
        I(f'v_lshlrev_b32 {t0}, 7, {t0}')
        I(f'v_add_u32 {t0}, {F_Z2N}, {t0}')
    def poll_addr_qkv(self, St, t0, t1):
        I = St.I
        I(f's_lshl_b32 {self.s_t0}, {self.s_qr}, 2')
        I(f'v_and_b32 {t0}, 7, v0')
        I(f'v_add_u32 {t0}, {self.s_t0}, {t0}')
        I(f'v_subrev_u32 {t0}, 4, {t0}')
        I(f'v_max_i32 {t0}, 0, {t0}')
        I(f'v_lshlrev_b32 {t0}, 3, {t0}')
        I(f's_lshr_b32 {self.s_t0}, {self.s_h}, 2')
        I(f'v_add_u32 {t0}, {self.s_t0}, {t0}')
        I(f'v_lshlrev_b32 {t0}, 7, {t0}')
        I(f'v_add_u32 {t0}, {F_QKV}, {t0}')
    def poll_addr_o(self, St, t0, t1):
        I = St.I
        I(f's_lshr_b32 {self.s_t0}, {self.s_tb}, 2')
        I(f's_lshl_b32 {self.s_t0}, {self.s_t0}, 5')
        I(f'v_and_b32 {t0}, 31, v0')
        I(f'v_add_u32 {t0}, {self.s_t0}, {t0}')
        I(f'v_lshlrev_b32 {t0}, 7, {t0}')
        I(f'v_add_u32 {t0}, {F_O}, {t0}')
    def poll_addr_h(self, St, t0, t1):
        I = St.I
        I(f's_lshl_b32 {self.s_t0}, {self.s_tb}, 3')
        I(f'v_min_u32 {t0}, 6, v0')
        I(f'v_add_u32 {t0}, {self.s_t0}, {t0}')
        I(f'v_lshlrev_b32 {t0}, 7, {t0}')
        I(f'v_add_u32 {t0}, {F_H}, {t0}')

    def L_setup_g(self):
        L = self.L; I = L.I; V = self.lv; S = self.S
        self.v_s = self.xrow(4096)
        self.v_wo = self.w64(1024)
        self.s_wsp = S.alloc(1); self.s_z2n = S.alloc(1); self.s_w3 = S.alloc(1); self.s_ao = S.alloc(1); self.s_ah = S.alloc(1)
        I(f's_lshl_b32 {self.s_wsp}, {self.s_tb}, 18')
        I(f's_lshl_b32 {self.s_z2n}, {self.s_c}, 19')
        I(f's_add_u32 {self.s_z2n}, {self.s_z2n}, {self.s_wl2k}')
        I(f's_add_u32 {self.s_z2n}, {self.s_z2n}, {WZ2N}')
        I(f's_lshl_b32 {self.s_w3}, {self.s_c}, 7')
        I(f's_lshl_b32 {self.s_ao}, {self.s_wl}, 16')
        I(f's_lshl_b32 {self.s_t0}, {self.s_tb}, 11')
        I(f's_add_u32 {self.s_ao}, {self.s_ao}, {self.s_t0}')
        I(f's_add_u32 {self.s_ao}, {self.s_ao}, {WO_}')
        I(f's_mul_i32 {self.s_ah}, {self.s_tb}, 114688')
        I(f's_add_u32 {self.s_ah}, {self.s_ah}, {self.s_wl2k}')
        I(f's_add_u32 {self.s_ah}, {self.s_ah}, {WH}')

    def dma_lin_fix(self, blk, sbase, soff):
        self.dma2(blk, 'WS', (self.v_lin, self.v_lin), sbase, soff, sc1=True)

    def att_setup(self):
        L = self.L; I = L.I; V = self.lv; S = self.S
        t0, t1, t2, t3 = self.ltmp
        A = self.att = type('A', (), {})()
        A.qf = [V.alloc(4, 2) for _ in range(2)]
        A.kf = [V.alloc(4, 2) for _ in range(2)]
        A.S = [V.alloc(16, 2) for _ in range(2)]
        A.mA = V.alloc(16, 2); A.mB = V.alloc(16, 2)
        A.cm = V.alloc(16, 2); A.cA = V.alloc(16, 2); A.cB = V.alloc(16, 2)
        A.P = V.alloc(8, 2)
        A.vf = [[V.alloc(4, 2) for _ in range(2)] for _ in range(2)]
        A.O = V.alloc(16, 2)
        A.m = V.alloc(1); A.tm = V.alloc(1); A.pk = V.alloc(4, 4)
        A.vt = V.alloc(1); A.vh = V.alloc(1); A.ak = V.alloc(1); A.av = V.alloc(1); A.ao = V.alloc(1); A.aq = V.alloc(1)
        A.s_jmin = [S.alloc(1), S.alloc(1)]; A.s_q = S.alloc(1); A.s_kv = S.alloc(1); A.s_o = S.alloc(1)
        I(f'v_and_b32 {A.vt}, 31, v0')
        I(f'v_lshrrev_b32 {A.vh}, 5, v0')
        I(f'v_lshlrev_b32 {t0}, 2, {A.vh}')
        I(f'v_mov_b32 {t2}, {NINF}')
        for r in range(16):
            I(f'v_add_u32 {t1}, {8*(r>>2) + (r&3)}, {t0}')
            I(f'v_cmp_le_u32 vcc, {t1}, {A.vt}')
            I(f'v_cndmask_b32 {A.mB[r]}, {t2}, 0, vcc') if False else None
            I(f'v_cndmask_b32_e64 {A.mB[r]}, {t2}, 0, vcc')
            I(f'v_cndmask_b32_e64 {A.mA[r]}, 0, {t2}, vcc')
        for b in range(2):
            for g in range(2):
                for k in range(4): I(f'v_mov_b32 {A.vf[b][g][k]}, 0x3f803f80')
        I(f'v_lshrrev_b32 {t0}, 3, {A.vt}')
        I(f'v_and_b32 {t0}, 1, {t0}')
        I(f'v_xor_b32 {t0}, {t0}, {A.vh}')
        I(f'v_lshlrev_b32 {t0}, 4, {t0}')
        I(f'v_lshl_add_u32 {t0}, {A.vt}, 5, {t0}')
        I(f'v_mov_b32 {A.ao}, {t0}')
        I(f's_lshl_b32 {self.s_t0}, {self.s_wl}, 10')
        I(f's_add_u32 {self.s_t1}, {self.s_t0}, {KVB*BLK}')
        I(f'v_add_u32 {A.ak}, {self.s_t1}, {t0}')
        I(f'v_and_b32 {t0}, 15, v0')
        I(f'v_lshrrev_b32 {t1}, 3, {t0}')
        I(f'v_xor_b32 {t1}, {t1}, {A.vh}')
        I(f'v_lshlrev_b32 {t1}, 4, {t1}')
        I(f'v_lshl_add_u32 {t0}, {t0}, 5, {t1}')
        I(f's_add_u32 {self.s_t1}, {self.s_t0}, {(KVB+2)*BLK}')
        I(f'v_add_u32 {A.av}, {self.s_t1}, {t0}')
        I(f'v_lshlrev_b32 {t0}, 5, {A.vt}')
        I(f'v_lshl_add_u32 {A.aq}, {A.vh}, 4, {t0}')
        I(f's_lshl_b32 {A.s_q}, {self.s_h}, 16')
        I(f's_lshl_b32 {self.s_t0}, {self.s_qr}, 13')
        I(f's_add_u32 {A.s_o}, {A.s_q}, {self.s_t0}')
        I(f's_sub_u32 {self.s_t1}, {self.s_t0}, 8192')
        I(f's_max_i32 {self.s_t1}, {self.s_t1}, 0')
        I(f's_add_u32 {A.s_kv}, {A.s_q}, {self.s_t1}')
        I(f's_add_u32 {A.s_kv}, {A.s_kv}, {self.s_wl2k}')
        I(f's_add_u32 {A.s_q}, {A.s_o}, {self.s_wl2k}')
        I(f's_lshl_b32 {self.s_t1}, {self.s_wl}, 10')
        I(f's_add_u32 {A.s_o}, {A.s_o}, {self.s_t1}')
        for uu in range(2):
            I(f's_sub_u32 {A.s_jmin[uu]}, {8 - 4*uu}, {self.s_wl}')
            I(f's_cmp_eq_u32 {self.s_qr}, 0')
            I(f's_cselect_b32 {A.s_jmin[uu]}, {A.s_jmin[uu]}, 0')

    def att_loads(self):
        L = self.L; I = L.I; A = self.att
        self.L_poll(self.poll_addr_qkv)
        self.dma_lin_fix(KVB, A.s_kv, WK)
        self.dma_lin_fix(KVB + 2, A.s_kv, WVT)
        self.dma_lin_fix(KVB + 1, A.s_q, WK)
        self.dma_lin_fix(KVB + 3, A.s_q, WVT)
        for uu in range(2):
            I(f's_add_u32 {self.s_t0}, {A.s_o}, {WQ + uu*4096}')
            I(f'buffer_load_dwordx4 {A.qf[uu]}, {A.aq}, {self.srd["WS"]}, {self.s_t0} offen sc1')
        A.load_tok = L.vmtok()

    def att_atoms(self):
        L = self.L; I = L.I; A = self.att
        atoms = []
        st = {}
        def add(cost, fn, tag=None): atoms.append((cost, tag, fn))
        for uu in range(2):
            koff = lambda jj, uu=uu: (4 * uu + jj) * 1024
            order = list(range(8, -1, -1))
            def kread(jj, buf, uu=uu):
                I(f'ds_read_b128 {A.kf[buf]}, {A.ak} offset:{(4*uu+jj)*1024}'); st[('k', jj)] = L.lgtok()
            def smf(jj, buf, sb, cop, uu=uu):
                L.wait_lg(st[('k', jj)])
                I(f'v_mfma_f32_32x32x16_bf16 {A.S[sb]}, {A.kf[buf]}, {A.qf[uu]}, {cop}')
            c1 = lambda jj: str(A.mB) if jj == 8 else (str(A.mA) if jj == 0 else '0')
            add(8, lambda f=kread: (f(8, 0), f(7, 1)))
            add(8, lambda f=smf: f(8, 0, 0, c1(8)))
            for n, jj in enumerate(order):
                sb = n & 1
                if jj > 0:
                    nb = (n + 1) & 1
                    def nxt(jj=jj, nb=nb, n=n, kread=kread, smf=smf):
                        smf(jj - 1, nb, nb, c1(jj - 1))
                        if jj - 2 >= 0: kread(jj - 2, n & 1)
                    add(16, nxt)
                def mx(jj=jj, sb=sb, n=n):
                    X = A.S[sb]
                    if n == 0:
                        I(f'v_max3_f32 {A.m}, {X[0]}, {X[1]}, {X[2]}')
                        rest = list(range(3, 16))
                        I(f'v_max_f32 {A.m}, {A.m}, {X[15]}'); rest = rest[:-1]
                    else:
                        rest = list(range(16))
                    for k in range(0, len(rest), 2):
                        I(f'v_max3_f32 {A.m}, {A.m}, {X[rest[k]]}, {X[rest[k+1]]}')
                add(32, mx, tag=(uu, jj) if jj < 8 else None)
            def fin1():
                I(f'v_mov_b32 {A.tm}, {A.m}')
                I(f'v_permlane32_swap_b32 {A.tm}, {A.m}')
                I(f'v_max_f32 {A.m}, {A.m}, {A.tm}')
                I(f'v_sub_f32 {A.tm}, 0, {A.m}')
            add(20, fin1)
            add(64, lambda: [I(f'v_mov_b32 {A.cm[r]}, {A.tm}') for r in range(16)])
            add(64, lambda: [I(f'v_sub_f32 {A.cB[r]}, {A.mB[r]}, {A.m}') for r in range(16)])
            add(64, lambda: [I(f'v_sub_f32 {A.cA[r]}, {A.mA[r]}, {A.m}') for r in range(16)])
            c2 = lambda jj: str(A.cB) if jj == 8 else (str(A.cA) if jj == 0 else str(A.cm))
            def vread(jj, buf, uu=uu):
                I('s_mov_b32 exec_lo, 0xffff'); I('s_mov_b32 exec_hi, 0xffff')
                for g in range(2):
                    I(f'ds_read_b128 {A.vf[buf][g]}, {A.av} offset:{(4*uu+jj)*1024 + g*512}')
                I('s_mov_b64 exec, -1')
                st[('v', jj)] = L.lgtok()
            add(8, lambda f=kread: (f(8, 0), f(7, 1)))
            add(16, lambda f=vread: f(8, 0))
            add(8, lambda f=smf: f(8, 0, 0, c2(8)))
            for n, jj in enumerate(order):
                sb = n & 1
                if jj > 0:
                    nb = (n + 1) & 1
                    def nxt2(jj=jj, nb=nb, n=n, kread=kread, smf=smf, vread=vread):
                        smf(jj - 1, nb, nb, c2(jj - 1))
                        if jj - 2 >= 0: kread(jj - 2, n & 1)
                        vread(jj - 1, nb)
                    add(32, nxt2)
                tag = (uu, jj) if jj < 8 else None
                for half in range(2):
                    def ex(sb=sb, half=half):
                        X = A.S[sb]
                        for r in range(8 * half, 8 * half + 8): I(f'v_exp_f32 {X[r]}, {X[r]}')
                        for k in range(4): I(f'v_cvt_pk_bf16_f32 {A.P[4*half + k]}, {X[8*half + 2*k]}, {X[8*half + 2*k + 1]}')
                    add(80, ex, tag=tag)
                def wv(jj=jj): L.wait_lg(st[('v', jj)])
                add(4, wv)
                def pv(jj=jj, sb=sb, n=n):
                    for g in range(2):
                        c = '0' if (n == 0 and g == 0) else str(A.O)
                        I(f'v_mfma_f32_32x32x16_bf16 {A.O}, {A.vf[sb][g]}, {A.P.sub(4*g, 4)}, {c}')
                add(16, pv, tag=tag)
            def fin2(uu=uu):
                I(f'v_rcp_f32 {A.tm}, {A.O[8]}')
                for r in range(8): I(f'v_mul_f32 {A.O[r]}, {A.O[r]}, {A.tm}')
                self.pack_swap(A.pk, A.O.sub(0, 8), I=I)
                I(f's_add_u32 {self.s_t0}, {A.s_o}, {WO_ + uu*4096}')
                I(f'buffer_store_dwordx4 {A.pk}, {A.ao}, {self.srd["WS"]}, {self.s_t0} offen sc1')
                A.store_tok = L.vmtok()
            add(80, fin2)
        return atoms

    def emit_atoms(self, atoms):
        L = self.L; I = L.I; A = self.att
        k = 0
        while k < len(atoms):
            tag = atoms[k][1]
            if tag is None:
                atoms[k][2](); k += 1; continue
            e = k
            while e < len(atoms) and atoms[e][1] == tag: e += 1
            skip = self.lab('as')
            I(f's_cmp_gt_u32 {A.s_jmin[tag[0]]}, {tag[1]}')
            I(f's_cbranch_scc1 {skip}')
            lg0 = L.lg
            for a in atoms[k:e]: a[2]()
            assert L.lg == lg0, 'no LDS ops inside skippable regions'
            L.L(skip)
            k = e

    def L_g(self):
        L = self.L; I = L.I; cfg = self.cfg
        self.att_setup()
        atoms = self.att_atoms()
        KVS = G0 + cfg['kv_step']; A0 = KVS + 2; AE = G0 + cfg['att_end']
        nst = AE - A0 + 1
        total = sum(a[0] for a in atoms)
        chunks = {s: [] for s in range(A0, AE + 1)}
        acc = 0
        for a in atoms:
            s = A0 + min(nst - 1, int(acc * nst / total))
            chunks[s].append(a); acc += a[0]
        OW = AE + cfg.get('o_wait', 1)
        assert OW <= GR2 - 1
        for s in range(G0, PW):
            if s == KVS: self.att_loads()
            if s in chunks: self.emit_atoms(chunks[s])
            if s == OW + 1:
                skip = self.lab('of')
                I(f's_cmp_lg_u32 {self.s_wl}, 0')
                I(f's_cbranch_scc1 {skip}')
                sv = (L.vm, L.vm_waited)
                self.flag_store(L, F_O, self.s_qr, 32, self.s_h, self.ltmp, self.s_t0)
                L.L(skip)
                L.vm, L.vm_waited = sv
            items = self.sched.get(s, [])
            gi = [it for it in items if it.group in ('G', 'Z')]
            wi = [it for it in items if it.group == 'W3']
            assert len(gi) + len(wi) == len(items), [it.name for it in items]
            uncond = (s == KVS + 1) or (s == OW)
            if gi:
                skip = self.lab('gi')
                I(f's_cmp_eq_u32 {self.s_c}, 7')
                I(f's_cbranch_scc1 {skip}')
                for it in gi: it.emit(it); it.tok = L.vmtok()
                L.L(skip)
            for it in wi: it.emit(it); it.tok = L.vmtok()
            if uncond:
                c7 = self.lab('u7'); join = self.lab('uj')
                tok = self.att.load_tok if s == KVS + 1 else self.att.store_tok
                I(f's_cmp_eq_u32 {self.s_c}, 7')
                I(f's_cbranch_scc1 {c7}')
                self.L_wait_for_step(s + 1)
                L.wait_vm(tok)
                I(f's_branch {join}')
                L.L(c7)
                sv = L.vm_waited
                I('s_waitcnt vmcnt(0)')
                L.vm_waited = sv
                L.L(join)
                L.wait_lg(L.lgtok())
                I('s_barrier')
            else:
                skip = self.lab('gb')
                I(f's_cmp_eq_u32 {self.s_c}, 7')
                I(f's_cbranch_scc1 {skip}')
                self.L_wait_for_step(s + 1)
                I('s_barrier')
                L.L(skip)

    def L_p3(self):
        L = self.L; I = L.I; cfg = self.cfg
        polled_o = polled_h = False
        for s in range(PW, P0 + NP3 - 1):
            for it in self.sched.get(s, []):
                if it.group == 'AO' and not polled_o:
                    self.L_poll(self.poll_addr_o); polled_o = True
                if it.group == 'AH' and not polled_h:
                    self.L_poll(self.poll_addr_h); polled_h = True
                it.emit(it); it.tok = L.vmtok()
            self.L_wait_for_step(s + 1)
            I('s_barrier')
        assert polled_o and polled_h
        assert not any(self.sched.get(s) for s in range(P0 + NP3 - 1, P0 + NP3 + 1))

    def L_gate_setup_again(self):
        L = self.L; I = L.I
        t0, t1, t2, t3 = self.ltmp
        I(f'v_lshrrev_b32 {t0}, 4, v0')
        I(f'v_lshlrev_b32 {t0}, 4, {t0}')
        I(f'v_add_u32 {self.v_gw}, {M_GW}, {t0}')
        I(f'v_and_b32 {t0}, 15, v0')
        I(f's_lshl_b32 {self.s_t0}, {self.s_wl}, 4')
        I(f'v_add_u32 {t0}, {self.s_t0}, {t0}')
        I(f'v_lshrrev_b32 {t1}, 1, {t0}')
        I(f'v_and_b32 {t1}, 7, {t1}')
        I(f'v_lshrrev_b32 {t2}, 4, v0')
        for uu in range(2):
            I(f'v_add_u32 {t3}, {4*uu}, {t2}')
            I(f'v_xor_b32 {t3}, {t3}, {t1}')
            I(f'v_lshlrev_b32 {t3}, 4, {t3}')
            I(f'v_lshl_add_u32 {self.v_gx[uu][0]}, {t0}, 7, {t3}')
            I(f'v_add_u32 {self.v_gx[uu][1]}, 0x10000, {self.v_gx[uu][0]}')
            I(f'v_add_u32 {self.v_gx[uu][2]}, 0x20000, {self.v_gx[uu][0]}')

    def lds(self, pat3, blk, inner):
        a = blk * BLK + inner
        win = a >> 16
        off = a - (win << 16)
        assert (blk * BLK) >> 16 == win
        return f'{pat3[win]} offset:{off}'

    def windows(self, I, V, base):
        r = [base, V.alloc(1), V.alloc(1)]
        I(f'v_add_u32 {r[1]}, 0x10000, {base}')
        I(f'v_add_u32 {r[2]}, 0x20000, {base}')
        return r

    def C_setup_p1(self):
        C = self.C; I = C.I; V = self.cv; S = self.S
        self.s_rh = S.alloc(1); self.s_ch = S.alloc(1); self.s_c0 = S.alloc(1); self.s_c1 = S.alloc(1); self.s_c2 = S.alloc(1)
        I(f's_lshr_b32 {self.s_rh}, {self.s_w}, 1')
        I(f's_and_b32 {self.s_ch}, {self.s_w}, 1')
        t0 = V.alloc(1); t1 = V.alloc(1); t2 = V.alloc(1); t3 = V.alloc(1)
        self.ctmp = (t0, t1, t2, t3)
        self.v_t = V.alloc(1); self.v_h = V.alloc(1)
        I(f'v_and_b32 {self.v_t}, 31, v0')
        I(f'v_lshrrev_b32 {self.v_h}, 5, v0')
        I(f'v_lshrrev_b32 {t0}, 1, {self.v_t}')
        I(f'v_and_b32 {t0}, 7, {t0}')
        I(f'v_xor_b32 {t0}, {t0}, {self.v_h}')
        I(f'v_lshlrev_b32 {t0}, 4, {t0}')
        I(f'v_lshl_add_u32 {t0}, {self.v_t}, 7, {t0}')
        self.v_ax0 = V.alloc(1)
        I(f'v_mov_b32 {self.v_ax0}, {t0}')
        I(f's_lshl_b32 {self.s_c0}, {self.s_rh}, 12')
        I(f'v_add_u32 {t0}, {self.s_c0}, {t0}')
        self.ax = []
        for u in range(4):
            b = V.alloc(1)
            I(f'v_xor_b32 {b}, {32*u}, {t0}')
            self.ax.append(self.windows(I, V, b))
        I(f'v_lshrrev_b32 {t0}, 4, v0')
        I(f'v_and_b32 {t1}, 15, v0')
        kk = V.alloc(1); cc = V.alloc(1)
        I(f'v_lshrrev_b32 {t2}, 1, {t0}')
        I(f'v_lshlrev_b32 {t2}, 3, {t2}')
        I(f'v_lshrrev_b32 {t3}, 2, {t1}')
        I(f'v_add_u32 {kk}, {t2}, {t3}')
        I(f'v_and_b32 {t2}, 1, {t0}')
        I(f'v_lshlrev_b32 {t2}, 5, {t2}')
        I(f'v_and_b32 {t3}, 3, {t1}')
        I(f'v_lshlrev_b32 {t3}, 3, {t3}')
        I(f'v_add_u32 {cc}, {t2}, {t3}')
        self.aw128 = []
        for b in range(2):
            r = V.alloc(1)
            I(f's_lshl_b32 {self.s_c0}, {self.s_ch}, 1')
            I(f's_add_u32 {self.s_c0}, {self.s_c0}, {b}')
            I(f'v_lshrrev_b32 {t2}, 2, {t1}')
            I(f'v_xor_b32 {t2}, {self.s_c0}, {t2}')
            I(f'v_lshlrev_b32 {t2}, 6, {t2}')
            I(f'v_lshl_add_u32 {r}, {kk}, 8, {t2}')
            I(f'v_add_u32 {r}, {r}, {cc}')
            self.aw128.append(self.windows(I, V, r))
        r = V.alloc(1)
        I(f'v_lshrrev_b32 {t2}, 3, {t1}')
        I(f'v_xor_b32 {t2}, {self.s_ch}, {t2}')
        I(f'v_lshlrev_b32 {t2}, 6, {t2}')
        I(f'v_lshl_add_u32 {r}, {kk}, 7, {t2}')
        I(f'v_add_u32 {r}, {r}, {cc}')
        self.aw64 = self.windows(I, V, r)
        self.v_kk, self.v_cc = kk, cc
        self.accZ = V.alloc(32, 2); self.accY = V.alloc(32, 2); self.accQ = V.alloc(48, 2)
        self.fx = [V.alloc(4, 2) for _ in range(2)]
        self.fw = [[V.alloc(4, 2) for _ in range(3)] for _ in range(2)]

    def gemm_phase(self, s0, nsteps, reads, mfmas, first_reads_done=False, last_barrier=True, hooks=None, next_reads=None, U=4):
        C = self.C; I = C.I
        buf = self.buf
        if not first_reads_done:
            reads(0, 0, buf); self.rd_tok = C.lgtok()
        for j in range(nsteps):
            for u in range(U):
                cur_tok = self.rd_tok
                if u < U - 1:
                    reads(j, u + 1, buf ^ 1); nxt = C.lgtok()
                    C.wait_lg(cur_tok)
                else:
                    C.wait_lg(cur_tok)
                    if hooks and ('pre_barrier', j) in hooks: hooks[('pre_barrier', j)]()
                    if last_barrier or j < nsteps - 1: I('s_barrier')
                    if hooks and ('post_barrier', j) in hooks: hooks[('post_barrier', j)]()
                    if j < nsteps - 1:
                        reads(j + 1, 0, buf ^ 1); nxt = C.lgtok()
                    elif next_reads is not None:
                        next_reads(buf ^ 1); nxt = C.lgtok()
                    else:
                        nxt = C.lgtok()
                mfmas(j, u, buf)
                if hooks and ('post_mfma', j, u) in hooks: hooks[('post_mfma', j, u)]()
                buf ^= 1
                self.rd_tok = nxt
        self.buf = buf

    def zy_reads(self, wname):
        def reads(j, u, buf):
            I = self.C.I
            xb = self.it[f'XB{j}'].blk
            I(f'ds_read_b128 {self.fx[buf]}, {self.lds(self.ax[u], xb, 0)}')
            wb = self.it[f'{wname}_{j}_{u >> 1}'].blk
            for b in range(2):
                for t in range(2):
                    I(f'ds_read_b64_tr_b16 {self.fw[buf][b].sub(2*t, 2)}, {self.lds(self.aw128[b], wb, (u & 1) * 4096 + t * 1024)}')
        return reads
    def zy_mfmas(self, acc):
        def mf(j, u, buf):
            I = self.C.I
            for b in range(2):
                d = acc.sub(16 * b, 16)
                c = '0' if (j == 0 and u == 0) else str(d)
                I(f'v_mfma_f32_32x32x16_bf16 {d}, {self.fw[buf][b]}, {self.fx[buf]}, {c}')
        return mf
    def q_reads(self, j, u, buf):
        I = self.C.I
        xb = self.it[f'XA{j}'].blk
        I(f'ds_read_b128 {self.fx[buf]}, {self.lds(self.ax[u], xb, 0)}')
        for m, nm in enumerate('qkv'):
            wb = self.it[f'W{nm}{j}'].blk
            for t in range(2):
                I(f'ds_read_b64_tr_b16 {self.fw[buf][m].sub(2*t, 2)}, {self.lds(self.aw64, wb, u * 2048 + t * 512)}')
    def q_mfmas(self, j, u, buf):
        I = self.C.I
        for m in range(3):
            d = self.accQ.sub(16 * m, 16)
            c = '0' if (j == 0 and u == 0) else str(d)
            if m < 2: I(f'v_mfma_f32_32x32x16_bf16 {d}, {self.fw[buf][m]}, {self.fx[buf]}, {c}')
            else:     I(f'v_mfma_f32_32x32x16_bf16 {d}, {self.fx[buf]}, {self.fw[buf][m]}, {c}')

    def gelu_pk(self, acc, n, consts, tmp):
        I = self.C.I
        c0, c1, one = consts
        G = 4
        for g0 in range(0, n // 2, G):
            ps = list(range(g0, min(g0 + G, n // 2)))
            X = lambda p: acc.sub(2 * p, 2)
            T = lambda p: tmp.sub(2 * (p - g0), 2)
            for p in ps: I(f'v_pk_mul_f32 {T(p)}, {X(p)}, {X(p)}')
            for p in ps: I(f'v_pk_fma_f32 {T(p)}, {T(p)}, {c1}, {c0}')
            for p in ps: I(f'v_pk_mul_f32 {T(p)}, {T(p)}, {X(p)}')
            for p in ps:
                I(f'v_exp_f32 {T(p)[0]}, {T(p)[0]}'); I(f'v_exp_f32 {T(p)[1]}, {T(p)[1]}')
            for p in ps: I(f'v_pk_add_f32 {T(p)}, {T(p)}, {one}')
            for p in ps:
                I(f'v_rcp_f32 {T(p)[0]}, {T(p)[0]}'); I(f'v_rcp_f32 {T(p)[1]}, {T(p)[1]}')
            for p in ps: I(f'v_pk_mul_f32 {X(p)}, {X(p)}, {T(p)}')

    def C_consts(self):
        I = self.C.I; V = self.cv
        self.k_c0 = V.alloc(2, 2); self.k_c1 = V.alloc(2, 2); self.k_one = V.alloc(2, 2)
        for k in range(2):
            I(f'v_mov_b32 {self.k_c0[k]}, {fhex(GC0)}')
            I(f'v_mov_b32 {self.k_c1[k]}, {fhex(GC1)}')
            I(f'v_mov_b32 {self.k_one[k]}, 1.0')

    def xhalf_sum(self, x, tmp):
        I = self.C.I
        I(f'v_mov_b32 {tmp}, {x}')
        I(f'v_permlane32_swap_b32 {tmp}, {x}')
        I(f'v_add_f32 {x}, {x}, {tmp}')

    def z2_epilogue(self):
        C = self.C; I = C.I; V = self.cv; S = self.S
        tmp = V.alloc(8, 2)
        self.gelu_pk(self.accZ, 32, (self.k_c0, self.k_c1, self.k_one), tmp)
        a1 = tmp.sub(0, 2); a2 = tmp.sub(2, 2)
        I(f'v_pk_add_f32 {a1}, {self.accZ.sub(0,2)}, {self.accZ.sub(2,2)}')
        I(f'v_pk_mul_f32 {a2}, {self.accZ.sub(0,2)}, {self.accZ.sub(0,2)}')
        I(f'v_pk_fma_f32 {a2}, {self.accZ.sub(2,2)}, {self.accZ.sub(2,2)}, {a2}')
        for p in range(2, 16):
            x = self.accZ.sub(2 * p, 2)
            I(f'v_pk_add_f32 {a1}, {a1}, {x}')
            I(f'v_pk_fma_f32 {a2}, {x}, {x}, {a2}')
        g = V.alloc(4, 4)
        I(f'v_add_f32 {g[0]}, {a1[0]}, {a1[1]}')
        I(f'v_add_f32 {g[1]}, {a2[0]}, {a2[1]}')
        self.xhalf_sum(g[0], tmp[4]); self.xhalf_sum(g[1], tmp[5])
        I(f'v_mov_b32 {g[2]}, {self.s_nonce}')
        I(f'v_mov_b32 {g[3]}, 0')
        I(f's_mul_i32 {self.s_c0}, {self.s_tb}, 14')
        I(f's_lshl_b32 {self.s_c1}, {self.s_c}, 1')
        I(f's_add_u32 {self.s_c0}, {self.s_c0}, {self.s_c1}')
        I(f's_add_u32 {self.s_c0}, {self.s_c0}, {self.s_ch}')
        I(f's_lshl_b32 {self.s_c0}, {self.s_c0}, 1')
        I(f's_add_u32 {self.s_c0}, {self.s_c0}, {self.s_rh}')
        I(f's_lshl_b32 {self.s_c0}, {self.s_c0}, 9')
        I(f's_add_u32 {self.s_c0}, {self.s_c0}, {STATS}')
        I(f'v_lshlrev_b32 {tmp[6]}, 4, {self.v_t}')
        I('s_mov_b32 exec_hi, 0')
        I(f'buffer_store_dwordx4 {g}, {tmp[6]}, {self.srd["WS"]}, {self.s_c0} offen sc1')
        I('s_mov_b32 exec_hi, -1')
        V.free(tmp); self._g = g

    def stats_issue(self):
        C = self.C; I = C.I; V = self.cv
        self.sg = V.alloc(28, 4); self.v_sa = V.alloc(1)
        self.s_sa0 = self.S.alloc(1); self.s_sa1 = self.S.alloc(1)
        t0 = self.ctmp[0]
        I(f'v_mul_u32_u24 {t0}, {7*1024}, {self.v_h}')
        I(f'v_lshl_add_u32 {self.v_sa}, {self.v_t}, 4, {t0}')
        I(f's_mul_i32 {self.s_sa0}, {self.s_tb}, 14336')
        I(f's_lshl_b32 {self.s_sa1}, {self.s_rh}, 9')
        I(f's_add_u32 {self.s_sa0}, {self.s_sa0}, {self.s_sa1}')
        I(f's_add_u32 {self.s_sa0}, {self.s_sa0}, {STATS}')
        I(f's_add_u32 {self.s_sa1}, {self.s_sa0}, 4096')
        self.stats_loads()
    def stats_loads(self):
        I = self.C.I
        for i in range(7):
            so = self.s_sa0 if i < 4 else self.s_sa1
            I(f'buffer_load_dwordx4 {self.sg.sub(4*i,4)}, {self.v_sa}, {self.srd["WS"]}, {so} offen offset:{(i % 4) * 1024} sc1')

    def ln_finalize(self):
        C = self.C; I = C.I; V = self.cv; S = self.S
        t0, t1, t2, t3 = self.ctmp
        s_cnt = S.alloc(1)
        I(f's_mov_b32 {s_cnt}, 0')
        lab = self.lab('stat'); done = self.lab('statd')
        C.L(lab)
        I('s_waitcnt vmcnt(0)')
        I(f'v_xor_b32 {t0}, {self.s_nonce}, {self.sg[2]}')
        for i in range(1, 7):
            I(f'v_xor_b32 {t1}, {self.s_nonce}, {self.sg[4*i+2]}')
            I(f'v_or_b32 {t0}, {t0}, {t1}')
        I(f'v_cmp_ne_u32 vcc, 0, {t0}')
        I('s_cmp_eq_u64 vcc, 0')
        I(f's_cbranch_scc1 {done}')
        I(f's_add_u32 {s_cnt}, {s_cnt}, 1')
        I(f's_cmp_gt_u32 {s_cnt}, 20000')
        I(f's_cbranch_scc1 {done}')
        self.stats_loads()
        I(f's_branch {lab}')
        C.L(done)
        C.reset_vm()
        I(f'v_add_f32 {t0}, {self.sg[0]}, {self.sg[4]}')
        I(f'v_add_f32 {t1}, {self.sg[1]}, {self.sg[5]}')
        for i in range(2, 7):
            I(f'v_add_f32 {t0}, {t0}, {self.sg[4*i]}')
            I(f'v_add_f32 {t1}, {t1}, {self.sg[4*i+1]}')
        self.xhalf_sum(t0, t2); self.xhalf_sum(t1, t3)
        I(f'v_mul_f32 {t0}, {fhex(1/896)}, {t0}')
        I(f'v_mul_f32 {t1}, {fhex(1/896)}, {t1}')
        I(f'v_fma_f32 {t1}, -{t0}, {t0}, {t1}')
        I(f'v_max_f32 {t1}, 0, {t1}')
        I(f'v_add_f32 {t1}, {fhex(1e-5)}, {t1}')
        I(f'v_rsq_f32 {t1}, {t1}')
        I(f'v_mul_f32 {t0}, {t0}, {t1}')
        for r in range(32):
            I(f'v_fma_f32 {self.accZ[r]}, {self.accZ[r]}, {t1}, -{t0}')
        pk = self.sg
        vz = [t2, t3]
        I(f'v_lshlrev_b32 {t2}, 5, {self.v_t}')
        I(f'v_lshl_add_u32 {t2}, {self.v_h}, 4, {t2}')
        I(f'v_xor_b32 {t3}, 128, {t2}')
        s_a = [S.alloc(1), S.alloc(1)]
        I(f's_lshl_b32 {s_a[0]}, {self.s_c}, 5')
        I(f's_add_u32 {s_a[0]}, {s_a[0]}, {self.s_tb}')
        I(f's_lshl_b32 {s_a[0]}, {s_a[0]}, 14')
        I(f's_lshl_b32 {s_a[1]}, {self.s_ch}, 13')
        I(f's_add_u32 {s_a[0]}, {s_a[0]}, {s_a[1]}')
        I(f's_lshl_b32 {s_a[1]}, {self.s_rh}, 10')
        I(f's_add_u32 {s_a[0]}, {s_a[0]}, {s_a[1]}')
        I(f's_add_u32 {s_a[0]}, {s_a[0]}, {WZ2N}')
        I(f's_add_u32 {s_a[1]}, {s_a[0]}, 4096')
        for b in range(2):
            for qp in range(2):
                o = pk.sub(4 * (2 * b + qp), 4)
                self.pack_swap(o, self.accZ.sub(16 * b + 8 * qp, 8))
                I(f'buffer_store_dwordx4 {o}, {vz[qp]}, {self.srd["WS"]}, {s_a[b]} offen offset:{qp*2048} sc1')
        S.free(s_cnt, s_a[0], s_a[1])
        V.free(self.v_sa); S.free(self.s_sa0, self.s_sa1)

    def pack_swap(self, o, src, swap=True, I=None):
        I = I or self.C.I
        for k in range(4):
            I(f'v_cvt_pk_bf16_f32 {o[k]}, {src[2*k]}, {src[2*k+1]}')
        if swap:
            I(f'v_permlane32_swap_b32 {o[0]}, {o[2]}')
            I(f'v_permlane32_swap_b32 {o[1]}, {o[3]}')

    def q_epilogue(self):
        C = self.C; I = C.I; V = self.cv; S = self.S
        t0, t1, t2, t3 = self.ctmp
        pk = V.alloc(24, 4)
        s_a = [S.alloc(1) for _ in range(3)]
        I(f's_lshl_b32 {s_a[0]}, {self.s_c}, 1')
        I(f's_add_u32 {s_a[0]}, {s_a[0]}, {self.s_ch}')
        I(f's_lshl_b32 {s_a[0]}, {s_a[0]}, 17')
        I(f's_lshl_b32 {s_a[1]}, {self.s_tb}, 11')
        I(f's_add_u32 {s_a[0]}, {s_a[0]}, {s_a[1]}')
        I(f's_lshl_b32 {s_a[1]}, {self.s_rh}, 10')
        I(f's_add_u32 {s_a[0]}, {s_a[0]}, {s_a[1]}')
        for r in range(16):
            I(f'v_mul_f32 {self.accQ[r]}, {fhex(QS)}, {self.accQ[r]}')
        I(f'v_lshlrev_b32 {t0}, 5, {self.v_t}')
        I(f'v_lshl_add_u32 {t0}, {self.v_h}, 4, {t0}')
        I(f'v_lshrrev_b32 {t1}, 3, {self.v_t}')
        I(f'v_and_b32 {t1}, 1, {t1}')
        I(f'v_lshlrev_b32 {t1}, 4, {t1}')
        I(f'v_xor_b32 {t1}, {t1}, {t0}')
        I(f'v_and_b32 {t2}, 15, {self.v_t}')
        I(f'v_lshrrev_b32 {t3}, 3, {t2}')
        I(f'v_xor_b32 {t3}, {t3}, {self.v_h}')
        I(f'v_lshlrev_b32 {t3}, 4, {t3}')
        I(f'v_lshl_add_u32 {t3}, {t2}, 5, {t3}')
        I(f'v_lshrrev_b32 {t2}, 4, {self.v_t}')
        I(f'v_lshl_add_u32 {t2}, {t2}, 16, {t3}')
        for m, (base, va) in enumerate(((WQ, t0), (WK, t1))):
            for hh in range(2):
                o = pk.sub(8 * m + 4 * hh, 4)
                self.pack_swap(o, self.accQ.sub(16 * m + 8 * hh, 8))
                I(f's_add_u32 {s_a[1]}, {s_a[0]}, {base + hh*65536}')
                I(f'buffer_store_dwordx4 {o}, {va}, {self.srd["WS"]}, {s_a[1]} offen sc1')
        I(f's_add_u32 {s_a[2]}, {s_a[0]}, {WVT}')
        for gq in range(2):
            o = pk.sub(16 + 4 * gq, 4)
            self.pack_swap(o, self.accQ.sub(32 + 8 * gq, 8), swap=False)
            I(f'buffer_store_dwordx4 {o}, {t2}, {self.srd["WS"]}, {s_a[2]} offen offset:{gq*512} sc1')
        for r in s_a: S.free(r)
        V.free(pk)

    def flag_store(self, St, base, s_idx_a, mul_a, s_idx_b, tmpv, stmp):
        I = St.I
        I(f's_mul_i32 {stmp}, {s_idx_a}, {mul_a}')
        I(f's_add_u32 {stmp}, {stmp}, {s_idx_b}')
        I(f's_lshl_b32 {stmp}, {stmp}, 7')
        I(f's_add_u32 {stmp}, {stmp}, {base}')
        I(f'v_mov_b32 {tmpv[0]}, {self.s_nonce}')
        I(f'v_mov_b32 {tmpv[1]}, 0')
        I('s_mov_b64 exec, 1')
        I(f'buffer_store_dword {tmpv[0]}, {tmpv[1]}, {self.srd["WS"]}, {stmp} offen sc1')
        I('s_mov_b64 exec, -1')

    def C_flag(self, base, a, mul, b):
        I = self.C.I
        skip = self.lab('fl')
        I(f's_cmp_lg_u32 {self.s_w}, 0')
        I(f's_cbranch_scc1 {skip}')
        save = (self.C.vm, self.C.vm_waited)
        self.flag_store(self.C, base, a, mul, b, self.ctmp, self.s_c0)
        self.C.L(skip)
        self.C.vm, self.C.vm_waited = save

    def C_p1(self):
        C = self.C; I = C.I; V = self.cv
        self.C_setup_p1()
        self.C_consts()
        self.buf = 0
        I(f's_cmp_eq_u32 {self.s_c}, 7')
        I('s_cbranch_scc1 L_C_c7')
        I('s_barrier')
        self.gemm_phase(Z0, 8, self.zy_reads('W2'), self.zy_mfmas(self.accZ),
                        next_reads=lambda buf: self.zy_reads('W1')(0, 0, buf))
        self.z2_epilogue()
        hooks = {('post_mfma', 6, 0): self.stats_issue}
        self.gemm_phase(Y0, 8, self.zy_reads('W1'), self.zy_mfmas(self.accY), first_reads_done=True, hooks=hooks,
                        next_reads=lambda buf: self.q_reads(0, 0, buf))
        self.ln_finalize()
        I('s_branch L_C_merge')
        C.L('L_C_c7')
        sv = (C.lg, C.lg_waited, C.vm, C.vm_waited)
        I('s_barrier')
        self.q_reads(0, 0, self.buf)
        C.lg, C.lg_waited, C.vm, C.vm_waited = sv
        C.L('L_C_merge')
        def z2n_flag_wait():
            C.wait_vm(C.vmtok(), force=True)
        def z2n_flag():
            self.C_flag(F_Z2N, self.s_tb, 8, self.s_c)
        hooks = {('pre_barrier', 1): z2n_flag_wait, ('post_barrier', 1): z2n_flag}
        self.gemm_phase(Q0, 8, self.q_reads, self.q_mfmas, first_reads_done=True, hooks=hooks)
        self.q_epilogue()
        C.wait_vm(C.vmtok(), force=True)
        I('s_barrier')
        self.C_flag(F_QKV, self.s_tb, 8, self.s_c)

    def C_setup_g(self):
        C = self.C; I = C.I; V = self.cv
        t0, t1, t2, t3 = self.ctmp
        for u in range(4): V.free(*self.ax[u])
        for b in range(2): V.free(*self.aw128[b])
        V.free(self.accZ, self.accQ, self.fx[0], self.fx[1], *self.fw[0], *self.fw[1], self.sg, self._g)
        self.ag = [[None, None], [None, None]]
        I(f's_lshl_b32 {self.s_c0}, {self.s_rh}, 6')
        I(f'v_xor_b32 {t0}, {self.s_c0}, {self.v_ax0}')
        for tb32 in range(2):
            I(f's_xor_b32 {self.s_c0}, {self.s_rh}, {tb32}')
            I(f's_lshl_b32 {self.s_c0}, {self.s_c0}, 12')
            for ul in range(2):
                r = V.alloc(1)
                I(f'v_xor_b32 {r}, {32*ul}, {t0}')
                I(f'v_add_u32 {r}, {self.s_c0}, {r}')
                self.ag[tb32][ul] = self.windows(I, V, r)
        self.az = []
        I(f'v_lshrrev_b32 {t0}, 4, v0')
        I(f'v_and_b32 {t0}, 1, {t0}')
        I(f'v_and_b32 {t1}, 3, v0')
        I(f'v_lshlrev_b32 {t1}, 3, {t1}')
        I(f'v_lshl_add_u32 {t1}, {t0}, 11, {t1}')
        I(f's_lshl_b32 {self.s_c0}, {self.s_ch}, 13')
        I(f's_lshl_b32 {self.s_c1}, {self.s_rh}, 10')
        I(f's_add_u32 {self.s_c0}, {self.s_c0}, {self.s_c1}')
        I(f'v_add_u32 {t1}, {self.s_c0}, {t1}')
        for t in range(2):
            r = V.alloc(1)
            I(f'v_xor_b32 {t2}, {t}, {t0}')
            I(f'v_lshlrev_b32 {t2}, 2, {t2}')
            I(f'v_add_u32 {t2}, {t2}, {self.v_kk}')
            I(f'v_lshl_add_u32 {r}, {t2}, 5, {t1}')
            self.az.append(self.windows(I, V, r))
        self.accG = [[V.alloc(16, 2) for _ in range(2)] for _ in range(2)]
        self.gw = [[V.alloc(4, 2) for _ in range(2)] for _ in range(2)]
        self.gz = [[V.alloc(4, 2) for _ in range(2)] for _ in range(2)]
        self.g_tmp = V.alloc(1); self.v_bsp = V.alloc(1)
        I(f's_lshl_b32 {self.s_c0}, {self.s_tb}, 7')
        I(f's_lshl_b32 {self.s_c1}, {self.s_rh}, 6')
        I(f's_add_u32 {self.s_c0}, {self.s_c0}, {self.s_c1}')
        I(f'v_lshlrev_b32 {t0}, 1, {self.v_t}')
        I(f'buffer_load_ushort {self.v_bsp}, {t0}, {self.srd["BSP"]}, {self.s_c0} offen')
        self.bsp_tok = C.vmtok()

    def g_reads(self, j, ul, buf):
        I = self.C.I
        wb = self.it[f'WS{j}'].blk; zb = self.it[f'Z{j}_0'].blk
        assert self.it[f'Z{j}_1'].blk == zb + 1
        for tb32 in range(2):
            I(f'ds_read_b128 {self.gw[buf][tb32]}, {self.lds(self.ag[tb32][ul], wb, 0)}')
        for b in range(2):
            for t in range(2):
                I(f'ds_read_b64_tr_b16 {self.gz[buf][b].sub(2*t, 2)}, {self.lds(self.az[t], zb, b * 4096 + ul * 512)}')
    def g_mfmas(self, j, ul, buf):
        I = self.C.I
        for b in range(2):
            for tb32 in range(2):
                d = self.accG[b][tb32]
                c = '0' if (j == 0 and ul == 0) else str(d)
                I(f'v_mfma_f32_32x32x16_bf16 {d}, {self.gz[buf][b]}, {self.gw[buf][tb32]}, {c}')
    def gelu_one(self, r, part):
        I = self.C.I; x = self.accY[r]; t = self.g_tmp
        if part == 0:
            I(f'v_mul_f32 {t}, {x}, {x}')
            I(f'v_fma_f32 {t}, {t}, {self.k_c1[0]}, {self.k_c0[0]}')
            I(f'v_mul_f32 {t}, {t}, {x}')
            I(f'v_exp_f32 {t}, {t}')
        else:
            I(f'v_add_f32 {t}, 1.0, {t}')
            I(f'v_rcp_f32 {t}, {t}')
            I(f's_nop 0')
            I(f'v_mul_f32 {x}, {x}, {t}')

    def C_g(self):
        C = self.C; I = C.I; V = self.cv; S = self.S
        t0, t1, t2, t3 = self.ctmp
        I(f's_cmp_eq_u32 {self.s_c}, 7')
        I('s_cbranch_scc1 L_C_g7')
        sv_alloc = None
        self.C_setup_g()
        self.buf = 0
        hooks = {}
        for j in range(32):
            for ul in range(2):
                hooks[('post_mfma', j, ul)] = (lambda j=j, ul=ul: self.gelu_one(j, ul))
        self.gemm_phase(G0, 32, self.g_reads, self.g_mfmas, hooks=hooks, U=2)
        red = KVB * BLK
        va = V.alloc(1); vb = V.alloc(1)
        I(f's_lshl_b32 {self.s_c0}, {self.s_w}, 13')
        I(f's_add_u32 {self.s_c0}, {self.s_c0}, {red}')
        I(f'v_lshl_add_u32 {va}, v0, 4, {self.s_c0}')
        I(f'v_xor_b32 {vb}, {2*BLK}, {va}') if (red // BLK) % 4 == 0 else None
        if (red // BLK) % 4 != 0:
            I(f's_xor_b32 {self.s_c0}, {self.s_w}, 2')
            I(f's_lshl_b32 {self.s_c0}, {self.s_c0}, 13')
            I(f's_add_u32 {self.s_c0}, {self.s_c0}, {red}')
            I(f'v_lshl_add_u32 {vb}, v0, 4, {self.s_c0}')
        for b in range(2):
            for q in range(4):
                I(f'ds_write_b128 {va}, {self.accG[b][1].sub(4*q, 4)} offset:{(4*b+q)*1024}')
        C.wait_lg(C.lgtok())
        I('s_barrier')
        rec = [self.accG[0][1], self.accG[1][1]]
        for b in range(2):
            for q in range(4):
                I(f'ds_read_b128 {rec[b].sub(4*q, 4)}, {vb} offset:{(4*b+q)*1024}')
        C.wait_vm(self.bsp_tok)
        I(f'v_lshlrev_b32 {self.v_bsp}, 16, {self.v_bsp}')
        s_a = [S.alloc(1), S.alloc(1)]
        I(f's_mul_i32 {s_a[0]}, {self.s_tb}, 114688')
        I(f's_lshl_b32 {s_a[1]}, {self.s_c}, 1')
        I(f's_add_u32 {s_a[1]}, {s_a[1]}, {self.s_ch}')
        I(f's_lshl_b32 {s_a[1]}, {s_a[1]}, 13')
        I(f's_add_u32 {s_a[0]}, {s_a[0]}, {s_a[1]}')
        I(f's_lshl_b32 {s_a[1]}, {self.s_rh}, 10')
        I(f's_add_u32 {s_a[0]}, {s_a[0]}, {s_a[1]}')
        I(f's_add_u32 {s_a[0]}, {s_a[0]}, {WH}')
        I(f's_add_u32 {s_a[1]}, {s_a[0]}, 4096')
        I(f'v_lshrrev_b32 {t0}, 3, {self.v_t}')
        I(f'v_and_b32 {t0}, 1, {t0}')
        I(f'v_xor_b32 {t0}, {t0}, {self.v_h}')
        I(f'v_lshlrev_b32 {t0}, 4, {t0}')
        I(f'v_lshl_add_u32 {t0}, {self.v_t}, 5, {t0}')
        C.wait_lg(C.lgtok())
        pk = V.alloc(16, 4)
        for b in range(2):
            a = self.accG[b][0]
            for r in range(16):
                I(f'v_add_f32 {a[r]}, {a[r]}, {rec[b][r]}')
                I(f'v_add_f32 {a[r]}, {a[r]}, {self.v_bsp}')
                I(f'v_mul_f32 {a[r]}, {a[r]}, {self.accY[16*b + r]}')
            for qp in range(2):
                o = pk.sub(4 * (2 * b + qp), 4)
                self.pack_swap(o, a.sub(8 * qp, 8))
                I(f'buffer_store_dwordx4 {o}, {t0}, {self.srd["WS"]}, {s_a[b]} offen offset:{qp*2048} sc1')
        C.wait_vm(C.vmtok(), force=True)
        I('s_barrier')
        self.C_flag(F_H, self.s_tb, 8, self.s_c)
        I('s_branch L_C_p3')
        C.L('L_C_g7')
        skip = self.lab('nn')
        I(f's_cmp_lg_u32 {self.s_tb}, 0')
        I(f's_cbranch_scc1 {skip}')
        I(f's_cmp_lg_u32 {self.s_w}, 0')
        I(f's_cbranch_scc1 {skip}')
        self.nonce_update()
        C.L(skip)
        I('s_barrier')
        I('s_barrier')
        C.L('L_C_p3')
        C.vm_waited = C.vm - 1 if False else C.vm_waited
        V.free(pk, va, vb, *[x for l in self.accG for x in l], *[x for l in self.gw for x in l], *[x for l in self.gz for x in l], self.g_tmp, self.v_bsp, self.accY)
        for l in self.ag:
            for p in l: V.free(*p)
        for p in self.az: V.free(*p)
        S.free(*s_a)

    def nonce_update(self):
        C = self.C; I = C.I
        t0, t1, t2, t3 = self.ctmp
        for k in range(4):
            def setup(St, a, b, k=k):
                St.I(f'v_add_u32 {a}, {64*k}, v0')
                St.I(f'v_lshlrev_b32 {a}, 7, {a}')
                St.I(f'v_add_u32 {a}, {F_QKV}, {a}')
            sv = (C.vm, C.vm_waited)
            self.L_poll(setup, St=C, tmp=(t0, t1), stmp=self.s_c1)
            C.vm, C.vm_waited = sv
        I(f'v_mov_b32 {t0}, {self.s_nonce}')
        I(f'v_mov_b32 {t1}, 0')
        I('s_mov_b64 exec, 1')
        I(f'buffer_store_dword {t0}, {t1}, {self.srd["WS"]}, 0 offen sc1')
        I('s_mov_b64 exec, -1')

    def C_p3(self):
        C = self.C; I = C.I; V = self.cv; S = self.S
        t0, t1, t2, t3 = self.ctmp
        r = V.alloc(1)
        I(f'v_lshrrev_b32 {t0}, 3, {self.v_t}')
        I(f'v_and_b32 {t0}, 1, {t0}')
        I(f'v_xor_b32 {t0}, {t0}, {self.v_h}')
        I(f'v_lshlrev_b32 {t0}, 4, {t0}')
        I(f'v_lshl_add_u32 {t0}, {self.v_t}, 5, {t0}')
        I(f's_lshl_b32 {self.s_c0}, {self.s_rh}, 10')
        I(f'v_add_u32 {r}, {self.s_c0}, {t0}')
        ah = self.windows(I, V, r)
        accA = V.alloc(16, 2); accB = V.alloc(16, 2)
        fa = [V.alloc(4, 2) for _ in range(2)]; fw = [V.alloc(4, 2) for _ in range(2)]
        vg = V.alloc(1)
        def reads(j, u, buf):
            I(f'ds_read_b128 {fa[buf]}, {self.lds(ah, self.it[f"A{j}"].blk, u * 2048)}')
            for t in range(2):
                I(f'ds_read_b64_tr_b16 {fw[buf].sub(2*t, 2)}, {self.lds(self.aw64, self.it[f"W3_{j}"].blk, u * 2048 + t * 512)}')
        def mf(j, u, buf):
            d = accA if j < 8 else accB
            c = '0' if (u == 0 and j in (0, 8)) else str(d)
            I(f'v_mfma_f32_32x32x16_bf16 {d}, {fw[buf]}, {fa[buf]}, {c}')
        I('s_barrier')
        I(f's_lshl_b32 {self.s_c0}, {self.s_rh}, 7')
        I(f's_add_u32 {self.s_c0}, {self.s_c0}, {M_GATE}')
        I(f'v_lshl_add_u32 {t1}, {self.v_t}, 2, {self.s_c0}')
        I(f'ds_read_b32 {vg}, {t1}')
        self.buf = 0
        self.gemm_phase(P0, NP3, reads, mf, last_barrier=False)
        s_a = S.alloc(1); s_b = S.alloc(1)
        I(f's_lshl_b32 {s_a}, {self.s_tb}, 16')
        I(f's_lshl_b32 {s_b}, {self.s_rh}, 15')
        I(f's_add_u32 {s_a}, {s_a}, {s_b}')
        I(f's_lshl_b32 {s_b}, {self.s_c}, 7')
        I(f's_add_u32 {s_a}, {s_a}, {s_b}')
        I(f's_lshl_b32 {s_b}, {self.s_ch}, 6')
        I(f's_add_u32 {s_a}, {s_a}, {s_b}')
        I(f'v_lshlrev_b32 {t0}, 10, {self.v_t}')
        I(f'v_lshl_add_u32 {t0}, {self.v_h}, 4, {t0}')
        for r_ in range(16):
            I(f'v_sub_f32 {accA[r_]}, {accA[r_]}, {accB[r_]}')
            I(f'v_fma_f32 {accB[r_]}, {vg}, {accA[r_]}, {accB[r_]}')
        pk = V.alloc(8, 4)
        for qp in range(2):
            o = pk.sub(4 * qp, 4)
            self.pack_swap(o, accB.sub(8 * qp, 8))
            I(f'buffer_store_dwordx4 {o}, {t0}, {self.srd["OUT"]}, {s_a} offen offset:{qp*32}')

    def debug_dump_z1(self):
        C = self.C; I = C.I
        t0 = self.ctmp[0]
        I(f's_lshl_b32 {self.s_c0}, {self.s_tb}, 3')
        I(f's_add_u32 {self.s_c0}, {self.s_c0}, {self.s_c}')
        I(f's_lshl_b32 {self.s_c0}, {self.s_c0}, 2')
        I(f's_add_u32 {self.s_c0}, {self.s_c0}, {self.s_w}')
        I(f's_lshl_b32 {self.s_c0}, {self.s_c0}, 13')
        I(f's_add_u32 {self.s_c0}, {self.s_c0}, {WDBG}')
        I(f'v_lshlrev_b32 {t0}, 2, v0')
        for r in range(32):
            if r and r % 16 == 0: I(f's_add_u32 {self.s_c0}, {self.s_c0}, 4096')
            I(f'buffer_store_dword {self.accY[r]}, {t0}, {self.srd["WS"]}, {self.s_c0} offen offset:{(r % 16) * 256}')

    def build(self):
        self.prologue()
        self.plan_p1_needed = True
        self.plan_p1()
        self.L_p1()
        self.C_p1()
        if self.stop == 'p1':
            if self.debug: self.debug_dump_z1()
            self.C.I('s_waitcnt vmcnt(0)')
            self.C.I('s_endpgm')
            self.L.I('s_waitcnt vmcnt(0)')
            self.L.I('s_endpgm')
        else:
            self.L_g(); self.L_p3()
            self.L.I('s_endpgm')
            self.C_g(); self.C_p3()
            self.C.I('s_endpgm')
        allins = self.pre.ins + self.C.ins + self.L.ins + [Ins('L_exit:'), Ins('s_endpgm')]
        n = fix_hazards_fast(allins)
        body = Stream(); body.ins = allins
        nv = max(self.cv.maxused, self.lv.maxused) + 1
        txt = f"""; Fused gated-mix kernel (generated by gen/gen.py)
; @launch grid=(256,1,1) block=(512,1,1) lds={LDS_BYTES}
.amdgcn_target "amdgcn-amd-amdhsa--gfx950"
.text
.globl {KNAME}
.p2align 8
.type {KNAME},@function
{KNAME}:
{body.text()}
.section .rodata,"a"
.p2align 6
.amdhsa_kernel {KNAME}
  .amdhsa_next_free_vgpr 256
  .amdhsa_next_free_sgpr 102
  .amdhsa_accum_offset 256
  .amdhsa_group_segment_fixed_size 0
  .amdhsa_kernarg_size 96
  .amdhsa_user_sgpr_count 2
  .amdhsa_user_sgpr_kernarg_segment_ptr 1
  .amdhsa_system_sgpr_workgroup_id_x 1
.end_amdhsa_kernel
"""
        sys.stderr.write(f'instructions: {len(allins)}  nops inserted: {n}  vgpr C {self.cv.maxused+1} L {self.lv.maxused+1} sgpr {self.S.maxused+1}\n')
        return txt

if __name__ == '__main__':
    import argparse
    ap = argparse.ArgumentParser()
    ap.add_argument('--stop', default='all'); ap.add_argument('--debug', action='store_true'); ap.add_argument('-o', default='out.s')
    a = ap.parse_args()
    open(a.o, 'w').write(Gen(a.stop, a.debug).build())
```

```python
class Item:
    def __init__(self, name, fu, lu, emit, earliest=-10**9, nops=2, fixed=None, group=None):
        self.name = name; self.fu = fu; self.lu = lu; self.emit = emit; self.earliest = earliest
        self.fixed = fixed; self.group = group
        self.blk = None; self.issue = None; self.nops = nops
        self.tok = None

class Planner:
    def __init__(self, nblocks):
        self.nb = nblocks
        self.items = []
    def add(self, *a, **k):
        it = Item(*a, **k); self.items.append(it); return it
    def plan(self, s0, s1, cap=None, preoccupied=None, reserved=None):
        free = [b for b in range(self.nb) if not (preoccupied and b in preoccupied)]
        busy = dict(preoccupied or {})
        sched = {}
        pend = [it for it in self.items if it.blk is None]
        for s in range(s0, s1 + 1):
            for b, lu in list(busy.items()):
                if lu <= s - 1:
                    del busy[b]; free.append(b)
            free.sort()
            lst = []
            n = 0
            while pend and free:
                it = pend[0]
                if it.earliest > s: break
                if cap is not None and n >= cap(s) and it.fu > s + 1: break
                if it.fixed is not None:
                    if not all(b in free for b in it.fixed): break
                    for b in it.fixed:
                        free.remove(b); busy[b] = it.lu
                    it.blk = it.fixed[0]; it.issue = s
                else:
                    cand = [b for b in free if not (reserved and any(b in rb and it.lu >= r0 and (it.fu - 1 if False else s) <= r1 for rb, r0, r1 in reserved))]
                    if not cand: break
                    it.blk = cand[0]; free.remove(it.blk); it.issue = s
                    busy[it.blk] = it.lu
                lst.append(it); pend.pop(0); n += 1
            sched[s] = lst
            for it in pend:
                assert it.fu > s + 1, f'item {it.name} (first use {it.fu}) not issued by step {s}'
        assert not pend, [it.name for it in pend]
        return sched
```

```python
import sys, math, struct, json
sys.path.insert(0, 'gen')
from asmlib import *
from plan import *

KNAME = 'gated_mix__sliding_block__mixer_gmlp__prompt_kernel'

WS_NONCE = 0
F_Z2N = 0x1000
F_QKV = F_Z2N + 0x8000
F_H   = F_QKV + 0x8000
F_O   = F_H + 0x8000
STATS = 0x80000
WQ = 1 << 20
WK = 3 << 20
WVT = 5 << 20
WZ2N = 7 << 20
WH = 11 << 20
WO_ = 15 << 20
WDBG = 17 << 20
WS_SIZE = 32 << 20

BLK = 8192
NBLK = 19
MISC = 19 * BLK
M_GW = MISC
M_GATE = MISC + 1024
LDS_BYTES = 160 * 1024

QS = 0.25 * math.log2(math.e)
GC0 = -2.0 * math.sqrt(2.0 / math.pi) * math.log2(math.e)
GC1 = GC0 * 0.044715

def fbits(x): return struct.unpack('<I', struct.pack('<f', x))[0]
def fhex(x): return f'0x{fbits(x):08x}'

Z0, Q0, Y0 = 0, 8, 16
G0 = 24
P0 = 56
NP3 = 22
KVB = 15
NINF = '0xff800000'

DEFAULTS = dict(w3_ahead=8, w3_ahead2=9, h_chk=5, h_drain=2, kv_chk=-1, att_len=23, o_chk=30, z_chk=4, ln_step=4, st_step=2, cap0=6, capz=4, capg=5, capp=4,
                pf_w=0, pf_w_step=1, pf_wsp=0, pf_w3=0, pf_code=1, pf_wsp_step=1, prioL=3, prioC=0, spin=200000)

class Gen:
    def __init__(self, **cfg):
        self.cfg = dict(DEFAULTS); self.cfg.update(cfg)
        self.pre = Stream(); self.C = Stream(); self.L = Stream()
        self.Cslow = Stream(); self.Lslow = Stream()
        self.S = RegAlloc('s', 3, 101)
        self.cv = RegAlloc('v', 1, 255)
        self.lv = RegAlloc('v', 1, 255)
        self.uid = 0
        self.prof_names = {}

    def lab(self, n):
        self.uid += 1
        return f'L_{n}_{self.uid}'

    def prof_init(self, St, V):
        if not self.cfg.get('prof'): return
        p = St.prof = dict(v=[V.alloc(1), V.alloc(1)], s=self.S.alloc(2, 2), n=0, names=[])
        St.I(f'v_mov_b32 {p["v"][0]}, 0'); St.I(f'v_mov_b32 {p["v"][1]}, 0')
        St.I(f'v_writelane_b32 {p["v"][0]}, {self.s_rt0[0]}, 0'); St.I(f'v_writelane_b32 {p["v"][0]}, {self.s_t00[0]}, 1')
        p['names'] += ['entry_rt', 'entry']; p['n'] = 2
    SPARSE = ('b-1', 'b7', 'b15', 'b23', 'b24', 'b33', 'b42', 'b51', 'b56', 'b64', 'end', 'end_rt', 'setup')
    def stamp(self, St, name, real=False):
        if not self.cfg.get('prof'): return
        if self.cfg['prof'] == 2 and St is self.L and name not in self.SPARSE: return
        p = St.prof; n = p['n']
        assert n < 128
        St.I(f's_memrealtime {p["s"]}' if real else f's_memtime {p["s"]}')
        St.I('s_waitcnt lgkmcnt(0)')
        St.I(f'v_writelane_b32 {p["v"][n // 64]}, {p["s"][0]}, {n % 64}')
        p['names'].append(name); p['n'] = n + 1
    def prof_dump(self, St, tmpv, stmp, role):
        if not self.cfg.get('prof'): return
        p = St.prof; I = St.I
        I(f's_lshl_b32 {stmp}, s2, 3')
        I(f's_add_u32 {stmp}, {stmp}, {self.s_w}')
        I(f's_lshl_b32 {stmp}, {stmp}, 9')
        I(f's_add_u32 {stmp}, {stmp}, {WDBG}')
        I(f'v_lshlrev_b32 {tmpv}, 2, v0')
        I(f'buffer_store_dword {p["v"][0]}, {tmpv}, {self.srd["WS"]}, {stmp} offen')
        I(f'buffer_store_dword {p["v"][1]}, {tmpv}, {self.srd["WS"]}, {stmp} offen offset:256')
        self.prof_names[role] = p['names']

    def prologue(self):
        P = self.pre; I = P.I; S = self.S
        for k in range(3, 40): S.used[k] = True
        if self.cfg.get('prof'):
            self.s_rt0 = Reg('s', 96, 2); self.s_t00 = Reg('s', 98, 2)
            for k in range(96, 100): S.used[k] = True
            I(f's_memrealtime {self.s_rt0}'); I(f's_memtime {self.s_t00}')
        I('s_cmp_ge_u32 s2, 256')
        I('s_cbranch_scc1 L_exit')
        I('s_load_dwordx16 s[16:31], s[0:1], 0')
        I('s_load_dwordx8 s[32:39], s[0:1], 64')
        I('v_lshrrev_b32 v1, 6, v0')
        I('v_and_b32 v0, 63, v0')
        I('v_readfirstlane_b32 s3, v1')
        self.s_w = Reg('s', 3, 1)
        I('s_and_b32 s4, s2, 7')
        I('s_lshr_b32 s5, s2, 3')
        I('s_lshr_b32 s6, s4, 1')
        I('s_and_b32 s7, s4, 1')
        I('s_lshr_b32 s8, s5, 2')
        I('s_lshl_b32 s9, s6, 3')
        I('s_add_u32 s8, s8, s9')
        I('s_and_b32 s9, s5, 3')
        I('s_lshl_b32 s10, s7, 2')
        I('s_add_u32 s9, s9, s10')
        I('s_and_b32 s10, s5, 15')
        I('s_lshl_b32 s11, s7, 4')
        I('s_add_u32 s10, s10, s11')
        I('s_lshr_b32 s11, s5, 4')
        I('s_lshl_b32 s12, s6, 1')
        I('s_add_u32 s11, s11, s12')
        self.s_tb = Reg('s', 8, 1); self.s_c = Reg('s', 9, 1); self.s_h = Reg('s', 10, 1); self.s_qr = Reg('s', 11, 1)
        I('s_cmp_eq_u32 s9, 7')
        I('s_cselect_b32 s13, 0, -1')
        I('s_cmp_ge_u32 s3, 4')
        I('s_waitcnt lgkmcnt(0)')
        I('s_cbranch_scc1 L_entryL')
        self.args = dict(XA=0, WQKV=1, WO=2, WIN=4, WSP=5, BSP=6, WOUT=7, GW=8, OUT=9, WS=11)
        self.sizes = dict(XA=2097152, WQKV=1572864, WO=524288, WIN=1835008, WSP=8388608, BSP=4096, WOUT=917504, GW=1024, OUT=2097152, WS=WS_SIZE)
        self.srd = {}
        for n in ('XA', 'WIN', 'WQKV', 'GW', 'WS', 'WO', 'WOUT', 'BSP', 'OUT', 'WSP', 'WSN', 'WSPF'):
            self.srd[n] = S.alloc(4, 4, n)
        self.s_nonce = Reg('s', 12, 1)
        for k in (4, 5, 6, 7): S.used[k] = False
        import copy
        self.SL = copy.deepcopy(S); self.SC = copy.deepcopy(S)
    def free_staging(self):
        for k in range(14, 40): self.S.used[k] = False
    def mk_srd(self, I, *names):
        for name in names:
            r = self.srd[name]
            arg = {'WSN': 'WS', 'WSPF': 'WSP'}.get(name, name)
            p = 16 + 2 * self.args[arg]; size = self.sizes[arg]
            I(f's_mov_b32 {r[0]}, s{p}')
            I(f's_and_b32 {r[1]}, s{p+1}, 0xffff')
            if name in ('WIN', 'WSP', 'WSN'): I(f's_and_b32 {r[2]}, s13, {size}')
            else: I(f's_mov_b32 {r[2]}, {size}')
            I(f's_mov_b32 {r[3]}, 0x20000')

    def make_plan(self):
        cfg = self.cfg
        pl = self.pl = Planner(NBLK)
        self.it = {}
        def add(name, fu, lu, emit, **k): self.it[name] = pl.add(name, fu, lu, emit, **k)
        D = self.dma_atoms
        LIN = lambda: (self.v_lin, self.v_lin)
        for j in range(8):
            add(f'XB{j}', Z0 + j, Y0 + j, lambda it, j=j: D(it.blk, 'XA', self.v_x, self.s_xrow, j * 128))
            for hb in range(2):
                add(f'W2_{j}_{hb}', Z0 + j, Z0 + j, lambda it, j=j, hb=hb: D(it.blk, 'WIN', self.v_w128, self.s_w2, (64 * j + 32 * hb) * 3584))
        for j in range(8):
            for m, nm in enumerate('qkv'):
                add(f'W{nm}{j}', Q0 + j, Q0 + j, lambda it, j=j, m=m: D(it.blk, 'WQKV', self.v_wq, self.s_wq, 64 * j * 3072 + 1024 * m))
        for j in range(8):
            for hb in range(2):
                add(f'W1_{j}_{hb}', Y0 + j, Y0 + j, lambda it, j=j, hb=hb: D(it.blk, 'WIN', self.v_w128, self.s_w1, (64 * j + 32 * hb) * 3584))
        def ws(j): add(f'WS{j}', G0 + j, G0 + j, lambda it, j=j: D(it.blk, 'WSP', self.v_s, self.s_wsp, j * 128), fixed=[3 * (j % 5) + 2])
        def zz(j):
            for hb in range(2):
                add(f'Z{j}_{hb}', G0 + j, G0 + j, lambda it, j=j, hb=hb: D(it.blk, 'WSN', LIN(), self.s_z2n, j * 16384 + hb * 8192, sc1=True),
                    fixed=[3 * (j % 5) + hb], earliest=Y0 + cfg['z_chk'] + 1)
        ws(0); ws(1); zz(0); zz(1)
        for j in range(2, 32):
            ws(j); zz(j)
        NP = cfg['w3_ahead']
        def w3(j):
            if j < 8: add(f'W3_{j}', P0 + j, P0 + j, lambda it, j=j: D(it.blk, 'WO', self.v_wo, self.s_w3, 64 * j * 1024))
            else: add(f'W3_{j}', P0 + j, P0 + j, lambda it, j=j: D(it.blk, 'WOUT', self.v_wo, self.s_w3, 64 * (j - 8) * 1024))
        self.AO_earliest = G0 + cfg['o_chk'] + 1
        self.AH_earliest = P0 + cfg['h_chk'] + 1
        nw = 0
        def w3_upto(n):
            nonlocal nw
            while nw < min(n, NP3): w3(nw); nw += 1
        for j in range(NP3):
            w3_upto(j + (NP if j < 8 else cfg['w3_ahead2']) if j not in (0, 8) else (NP if j == 0 else 8 + cfg['w3_ahead2']))
            if j < 8: add(f'A{j}', P0 + j, P0 + j, lambda it, j=j: D(it.blk, 'WS', LIN(), self.s_ao, j * 4 * 65536, sc1=True), earliest=self.AO_earliest)
            else: add(f'A{j}', P0 + j, P0 + j, lambda it, j=j: D(it.blk, 'WS', LIN(), self.s_ah, (j - 8) * 8192, sc1=True), earliest=self.AH_earliest)
        def cap(s):
            if s < 0: return cfg['cap0']
            if s < G0 - 1: return cfg['capz']
            if s < P0 - 1: return cfg['capg']
            return cfg['capp']
        KVS = G0 + cfg['kv_chk'] + 1
        self.KVS = KVS; self.A0 = KVS + 2; self.AE = self.A0 + cfg['att_len'] - 1; self.OFL = self.AE + 1
        res = [(set(range(KVB, KVB + 4)), KVS, self.AE), ({0, 1, 2, 3, 4, 5}, Y0 + cfg['z_chk'] + 1, G0 - 1)]
        self.sched = pl.plan(-1, P0 + NP3, cap=cap, reserved=res)

    def dma_atoms(self, blk, srd, vofs, sbase, soff, sc1=False):
        I = self.L.I
        m = ' sc1' if sc1 else ''
        def a0():
            I(f's_add_u32 m0, {self.s_wl2k}, {blk*BLK}')
            I(f's_add_u32 {self.s_dma}, {sbase}, {soff}')
            I(f'buffer_load_dwordx4 {vofs[0]}, {self.srd[srd]}, {self.s_dma} offen{m} lds')
        def a1():
            I(f'buffer_load_dwordx4 {vofs[1]}, {self.srd[srd]}, {self.s_dma} offen offset:1024{m} lds')
        return [a0, a1]

    def L_step(self, s, atoms=(), pre=None, post=None, extra_tok=None, need_lg=False, name=None, interleave=True):
        L = self.L
        if pre: pre()
        dm = []
        for it in self.sched.get(s, []):
            a = it.emit(it)
            def last(a=a, it=it):
                a[1](); it.tok = L.vmtok()
            dm += [(a[0], last)]
        flat = [f for pair in dm for f in pair]
        atoms = list(atoms)
        if not atoms or not interleave:
            for f in flat: f()
            self.emit_atoms(atoms)
        else:
            total = sum(a[0] for a in atoms)
            n = len(flat)
            acc = 0; k = 0
            grp = []
            for a in atoms:
                while k < n and acc >= (k + self.cfg.get('dma_phase', 0.3)) * total / n - 1e-9 - (total / n) * 0.3:
                    self.emit_atoms(grp); grp = []
                    flat[k](); k += 1
                grp.append(a); acc += a[0]
            self.emit_atoms(grp)
            while k < n: flat[k](); k += 1
        if post: post()
        toks = [it.tok for it in self.pl.items if it.fu <= s + 1 and it.tok is not None]
        if extra_tok is not None: toks.append(extra_tok())
        if toks: L.wait_vm(max(toks))
        if need_lg: L.wait_lg(L.lgtok())
        L.I('s_barrier')
        self.stamp(L, name or f'b{s}')

    def L_pat_xrow(self, pitch):
        I = self.L.I; V = self.lv; t0, t1, t2, t3 = self.ltmp
        r = V.alloc(2, 1)
        I(f'v_lshrrev_b32 {t0}, 3, v0')
        I(f's_lshl_b32 {self.s_t0}, {self.s_wl}, 4')
        I(f'v_add_u32 {t0}, {self.s_t0}, {t0}')
        I(f's_mov_b32 {self.s_t0}, {pitch}')
        I(f'v_mul_lo_u32 {t0}, {t0}, {self.s_t0}')
        I(f'v_lshrrev_b32 {t1}, 4, v0')
        I(f'v_and_b32 {t2}, 7, v0')
        I(f'v_xor_b32 {t1}, {t1}, {t2}')
        I(f'v_lshl_add_u32 {r[0]}, {t1}, 4, {t0}')
        I(f'v_xor_b32 {t1}, 4, {t1}')
        I(f'v_lshl_add_u32 {r[1]}, {t1}, 4, {t0}')
        I(f'v_add_u32 {r[1]}, {8*pitch - 1024}, {r[1]}')
        return r
    def L_pat_w128(self):
        I = self.L.I; V = self.lv; t0, t1, t2, t3 = self.ltmp
        r = V.alloc(2, 1)
        I(f'v_lshrrev_b32 {t0}, 4, v0')
        I(f'v_and_b32 {t1}, 15, v0')
        I(f'v_lshrrev_b32 {t2}, 2, {t1}')
        I(f'v_xor_b32 {t2}, {t2}, {t0}')
        I(f'v_lshlrev_b32 {t2}, 2, {t2}')
        I(f'v_and_b32 {t1}, 3, {t1}')
        I(f'v_or_b32 {t1}, {t1}, {t2}')
        I(f's_lshl_b32 {self.s_t0}, {self.s_wl}, 3')
        I(f'v_add_u32 {t0}, {self.s_t0}, {t0}')
        I(f's_mov_b32 {self.s_t0}, 3584')
        I(f'v_mul_lo_u32 {t0}, {t0}, {self.s_t0}')
        I(f'v_lshl_add_u32 {r[0]}, {t1}, 4, {t0}')
        I(f'v_add_u32 {r[1]}, {4*3584 - 1024}, {r[0]}')
        return r
    def L_pat_w64(self, pitch):
        I = self.L.I; V = self.lv; t0, t1, t2, t3 = self.ltmp
        r = V.alloc(2, 1)
        I(f'v_lshrrev_b32 {t0}, 4, v0')
        I(f'v_and_b32 {t0}, 1, {t0}')
        I(f'v_and_b32 {t1}, 7, v0')
        I(f'v_lshrrev_b32 {t2}, 2, {t1}')
        I(f'v_xor_b32 {t2}, {t2}, {t0}')
        I(f'v_lshlrev_b32 {t2}, 2, {t2}')
        I(f'v_and_b32 {t1}, 3, {t1}')
        I(f'v_or_b32 {t1}, {t1}, {t2}')
        I(f'v_lshrrev_b32 {t0}, 3, v0')
        I(f's_lshl_b32 {self.s_t0}, {self.s_wl}, 4')
        I(f'v_add_u32 {t0}, {self.s_t0}, {t0}')
        I(f's_mov_b32 {self.s_t0}, {pitch}')
        I(f'v_mul_lo_u32 {t0}, {t0}, {self.s_t0}')
        I(f'v_lshl_add_u32 {r[0]}, {t1}, 4, {t0}')
        I(f'v_add_u32 {r[1]}, {8*pitch - 1024}, {r[0]}')
        return r

    def L_setup0(self):
        L = self.L; I = L.I; V = self.lv; S = self.S
        self.s_wl = S.alloc(1); self.s_wl2k = S.alloc(1); self.s_t0 = S.alloc(1); self.s_t1 = S.alloc(1); self.s_dma = S.alloc(1)
        self.ltmp = tuple(V.alloc(1) for _ in range(4))
        I(f's_sub_u32 {self.s_wl}, {self.s_w}, 4')
        I(f's_lshl_b32 {self.s_wl2k}, {self.s_wl}, 11')
        self.s_xrow = S.alloc(1); self.s_w2 = S.alloc(1); self.s_w1 = S.alloc(1); self.s_wq = S.alloc(1)
        I(f's_lshl_b32 {self.s_xrow}, {self.s_tb}, 16')
        I(f's_lshl_b32 {self.s_w1}, {self.s_c}, 8')
        I(f's_add_u32 {self.s_w2}, {self.s_w1}, 1792')
        I(f's_lshl_b32 {self.s_wq}, {self.s_c}, 7')
        self.mk_srd(I, 'XA', 'WIN')
        self.v_x = self.L_pat_xrow(1024)
        self.v_w128 = self.L_pat_w128()
    def L_setup1(self):
        L = self.L; I = L.I; V = self.lv; S = self.S
        t0, t1, t2, t3 = self.ltmp
        self.mk_srd(I, 'WQKV', 'GW', 'WS', 'WSN', 'WSP', 'WO', 'WOUT')
        self.free_staging()
        self.v_wq = self.L_pat_w64(3072)
        self.v_lin = V.alloc(1)
        I(f'v_lshlrev_b32 {self.v_lin}, 4, v0')
        I(f's_mov_b32 m0, {M_GW}')
        I(f'buffer_load_dwordx4 {self.v_lin}, {self.srd["GW"]}, 0 offen lds')
        self.g_acc = V.alloc(4, 2); self.g_fa = [V.alloc(4, 2) for _ in range(2)]; self.g_fb = [V.alloc(4, 2) for _ in range(2)]
        self.v_gw = V.alloc(1)
        I(f'v_lshrrev_b32 {t0}, 4, v0')
        I(f'v_lshlrev_b32 {t0}, 4, {t0}')
        I(f'v_add_u32 {self.v_gw}, {M_GW}, {t0}')
        self.v_gx = [[V.alloc(1) for _ in range(3)] for _ in range(2)]
        I(f'v_and_b32 {t0}, 15, v0')
        I(f's_lshl_b32 {self.s_t0}, {self.s_wl}, 4')
        I(f'v_add_u32 {t0}, {self.s_t0}, {t0}')
        I(f'v_lshrrev_b32 {t1}, 1, {t0}')
        I(f'v_and_b32 {t1}, 7, {t1}')
        I(f'v_lshrrev_b32 {t2}, 4, v0')
        for uu in range(2):
            I(f'v_add_u32 {t3}, {4*uu}, {t2}')
            I(f'v_xor_b32 {t3}, {t3}, {t1}')
            I(f'v_lshlrev_b32 {t3}, 4, {t3}')
            I(f'v_lshl_add_u32 {self.v_gx[uu][0]}, {t0}, 7, {t3}')
            I(f'v_add_u32 {self.v_gx[uu][1]}, 0x10000, {self.v_gx[uu][0]}')
            I(f'v_add_u32 {self.v_gx[uu][2]}, 0x20000, {self.v_gx[uu][0]}')
    def L_setup_g(self):
        L = self.L; I = L.I; S = self.S
        self.v_s = self.L_pat_xrow(4096)
        self.v_wo = self.L_pat_w64(1024)
        self.s_wsp = S.alloc(1); self.s_z2n = S.alloc(1); self.s_w3 = S.alloc(1); self.s_ao = S.alloc(1); self.s_ah = S.alloc(1)
        I(f's_lshl_b32 {self.s_wsp}, {self.s_tb}, 18')
        I(f's_lshl_b32 {self.s_z2n}, {self.s_c}, 19')
        I(f's_add_u32 {self.s_z2n}, {self.s_z2n}, {self.s_wl2k}')
        I(f's_add_u32 {self.s_z2n}, {self.s_z2n}, {WZ2N}')
        I(f's_lshl_b32 {self.s_w3}, {self.s_c}, 7')
        I(f's_lshl_b32 {self.s_ao}, {self.s_wl}, 16')
        I(f's_lshl_b32 {self.s_t0}, {self.s_tb}, 11')
        I(f's_add_u32 {self.s_ao}, {self.s_ao}, {self.s_t0}')
        I(f's_add_u32 {self.s_ao}, {self.s_ao}, {WO_}')
        I(f's_mul_i32 {self.s_ah}, {self.s_tb}, 114688')
        I(f's_add_u32 {self.s_ah}, {self.s_ah}, {self.s_wl2k}')
        I(f's_add_u32 {self.s_ah}, {self.s_ah}, {WH}')

    def gate_atoms(self, j):
        L = self.L; I = L.I
        blk = self.it[f'XB{j}'].blk
        win = (blk * BLK) >> 16; base = blk * BLK - (win << 16)
        st = {}
        def rd():
            for uu in range(2):
                I(f'ds_read_b128 {self.g_fa[uu]}, {self.v_gw} offset:{(64*j + 32*uu)*2}')
                I(f'ds_read_b128 {self.g_fb[uu]}, {self.v_gx[uu][win]} offset:{base}')
            st['t'] = L.lgtok()
        def mm():
            L.wait_lg(st['t'])
            for uu in range(2):
                c = '0' if (j == 0 and uu == 0) else str(self.g_acc)
                I(f'v_mfma_f32_16x16x32_bf16 {self.g_acc}, {self.g_fa[uu]}, {self.g_fb[uu]}, {c}')
        return [(10, None, rd), (10, None, lambda: None), (10, None, lambda: None), (10, None, mm)]
    def gate_finish(self):
        I = self.L.I
        t0, t1, t2, t3 = self.ltmp
        I(f'v_mul_f32 {t0}, {fhex(-math.log2(math.e))}, {self.g_acc[0]}')
        I(f'v_exp_f32 {t0}, {t0}')
        I(f'v_add_f32 {t0}, 1.0, {t0}')
        I(f'v_rcp_f32 {t0}, {t0}')
        I(f'v_and_b32 {t1}, 15, v0')
        I(f's_lshl_b32 {self.s_t0}, {self.s_wl}, 4')
        I(f'v_add_u32 {t1}, {self.s_t0}, {t1}')
        I(f'v_lshlrev_b32 {t1}, 2, {t1}')
        I(f'v_add_u32 {t1}, {M_GATE}, {t1}')
        I(f'ds_write_b32 {t1}, {t0}')

    def att_setup(self):
        L = self.L; I = L.I; V = self.lv; S = self.S
        t0, t1, t2, t3 = self.ltmp
        A = self.att = type('A', (), {})()
        A.qf = [V.alloc(4, 2) for _ in range(2)]
        A.kf = [V.alloc(4, 2) for _ in range(2)]
        A.S = [V.alloc(16, 2) for _ in range(2)]
        A.mA = V.alloc(16, 2); A.mB = V.alloc(16, 2)
        A.cm = V.alloc(16, 2); A.cA = V.alloc(16, 2); A.cB = V.alloc(16, 2)
        A.P = V.alloc(8, 2)
        A.vf = [[V.alloc(4, 2) for _ in range(2)] for _ in range(2)]
        A.O = V.alloc(16, 2)
        A.m = V.alloc(1); A.tm = V.alloc(1); A.pk = V.alloc(4, 4)
        A.vt = V.alloc(1); A.vh = V.alloc(1); A.ak = V.alloc(1); A.av = V.alloc(1); A.ao = V.alloc(1); A.aq = V.alloc(1)
        A.s_jmin = [S.alloc(1), S.alloc(1)]; A.s_q = S.alloc(1); A.s_kv = S.alloc(1); A.s_o = S.alloc(1)
        A.s_vm = S.alloc(2, 2)
        at = []
        def a0():
            I(f'v_and_b32 {A.vt}, 31, v0')
            I(f'v_lshrrev_b32 {A.vh}, 5, v0')
            I(f'v_lshlrev_b32 {t0}, 2, {A.vh}')
            I(f'v_sub_u32 {t0}, {A.vt}, {t0}')
            I(f'v_mov_b32 {t2}, {NINF}')
        at.append(a0)
        def masks(r):
            I(f'v_cmp_le_i32 vcc, {8*(r>>2) + (r&3)}, {t0}')
            I(f'v_cndmask_b32_e64 {A.mB[r]}, {t2}, 0, vcc')
            I(f'v_cndmask_b32_e64 {A.mA[r]}, 0, {t2}, vcc')
        for r in range(16): at.append(lambda r=r: masks(r))
        def a1():
            for b in range(2):
                for g in range(2):
                    for k in range(4): I(f'v_mov_b32 {A.vf[b][g][k]}, 0x3f803f80')
            I(f'v_lshrrev_b32 {t0}, 3, {A.vt}')
            I(f'v_and_b32 {t0}, 1, {t0}')
            I(f'v_xor_b32 {t0}, {t0}, {A.vh}')
            I(f'v_lshlrev_b32 {t0}, 4, {t0}')
            I(f'v_lshl_add_u32 {A.ao}, {A.vt}, 5, {t0}')
            I(f's_lshl_b32 {self.s_t0}, {self.s_wl}, 10')
            I(f's_add_u32 {self.s_t1}, {self.s_t0}, {KVB*BLK}')
            I(f'v_add_u32 {A.ak}, {self.s_t1}, {A.ao}')
            I(f'v_and_b32 {t0}, 15, v0')
            I(f'v_lshrrev_b32 {t1}, 3, {t0}')
            I(f'v_xor_b32 {t1}, {t1}, {A.vh}')
            I(f'v_lshlrev_b32 {t1}, 4, {t1}')
            I(f'v_lshl_add_u32 {t0}, {t0}, 5, {t1}')
            I(f's_add_u32 {self.s_t1}, {self.s_t0}, {(KVB+2)*BLK}')
            I(f'v_add_u32 {A.av}, {self.s_t1}, {t0}')
            I(f'v_lshlrev_b32 {t0}, 5, {A.vt}')
            I(f'v_lshl_add_u32 {A.aq}, {A.vh}, 4, {t0}')
        at.append(a1)
        def a2():
            I(f's_mov_b32 {A.s_vm[0]}, 0xffff'); I(f's_mov_b32 {A.s_vm[1]}, 0xffff')
            I(f's_lshl_b32 {A.s_q}, {self.s_h}, 16')
            I(f's_lshl_b32 {self.s_t0}, {self.s_qr}, 13')
            I(f's_add_u32 {A.s_o}, {A.s_q}, {self.s_t0}')
            I(f's_sub_u32 {self.s_t1}, {self.s_t0}, 8192')
            I(f's_max_i32 {self.s_t1}, {self.s_t1}, 0')
            I(f's_add_u32 {A.s_kv}, {A.s_q}, {self.s_t1}')
            I(f's_add_u32 {A.s_kv}, {A.s_kv}, {self.s_wl2k}')
            I(f's_add_u32 {A.s_q}, {A.s_o}, {self.s_wl2k}')
            I(f's_lshl_b32 {self.s_t1}, {self.s_wl}, 10')
            I(f's_add_u32 {A.s_o}, {A.s_o}, {self.s_t1}')
            for uu in range(2):
                I(f's_sub_u32 {A.s_jmin[uu]}, {8 - 4*uu}, {self.s_wl}')
                I(f's_cmp_eq_u32 {self.s_qr}, 0')
                I(f's_cselect_b32 {A.s_jmin[uu]}, {A.s_jmin[uu]}, 0')
        at.append(a2)
        return [(12, None, f) for f in at]

    def att_load_atoms(self):
        L = self.L; I = L.I; A = self.att
        at = []
        for blk, sb, off in ((KVB, A.s_kv, WK), (KVB + 2, A.s_kv, WVT), (KVB + 1, A.s_q, WK), (KVB + 3, A.s_q, WVT)):
            at += self.dma_atoms(blk, 'WS', (self.v_lin, self.v_lin), sb, off, sc1=True)
        def q():
            for uu in range(2):
                I(f's_add_u32 {self.s_t0}, {A.s_o}, {WQ + uu*4096}')
                I(f'buffer_load_dwordx4 {A.qf[uu]}, {A.aq}, {self.srd["WS"]}, {self.s_t0} offen sc1')
            A.load_tok = L.vmtok()
        def pair(a, b): return lambda: (a(), b())
        return [pair(at[0], at[1]), pair(at[2], at[3]), pair(at[4], at[5]), pair(at[6], at[7]), q]

    def att_atoms(self):
        L = self.L; I = L.I; A = self.att
        atoms = []
        st = {}
        def add(cost, fn, tag=None): atoms.append((cost, tag, fn))
        for uu in range(2):
            order = list(range(8, -1, -1))
            def kread(jj, buf, uu=uu):
                I(f'ds_read_b128 {A.kf[buf]}, {A.ak} offset:{(4*uu+jj)*1024}'); st[('k', jj)] = L.lgtok()
            def smf(jj, buf, sb, cop, uu=uu):
                L.wait_lg(st[('k', jj)])
                I(f'v_mfma_f32_32x32x16_bf16 {A.S[sb]}, {A.kf[buf]}, {A.qf[uu]}, {cop}')
            c1 = lambda jj: str(A.mB) if jj == 8 else (str(A.mA) if jj == 0 else '0')
            add(8, lambda f=kread: (f(8, 0), f(7, 1)))
            add(8, lambda f=smf: f(8, 0, 0, c1(8)))
            for n, jj in enumerate(order):
                sb = n & 1
                if jj > 0:
                    nb = (n + 1) & 1
                    def nxt(jj=jj, nb=nb, n=n, kread=kread, smf=smf):
                        smf(jj - 1, nb, nb, c1(jj - 1))
                        if jj - 2 >= 0: kread(jj - 2, n & 1)
                    add(16, nxt)
                def mx(jj=jj, sb=sb, n=n):
                    X = A.S[sb]
                    if n == 0:
                        I(f'v_max3_f32 {A.m}, {X[0]}, {X[1]}, {X[2]}')
                        I(f'v_max_f32 {A.m}, {A.m}, {X[15]}'); rest = list(range(3, 15))
                    else:
                        rest = list(range(16))
                    for k in range(0, len(rest), 2):
                        I(f'v_max3_f32 {A.m}, {A.m}, {X[rest[k]]}, {X[rest[k+1]]}')
                add(40, mx, tag=(uu, jj) if jj < 8 else None)
            def fin1():
                I(f'v_mov_b32 {A.tm}, {A.m}')
                I(f'v_permlane32_swap_b32 {A.tm}, {A.m}')
                I(f'v_max_f32 {A.m}, {A.m}, {A.tm}')
                I(f'v_sub_f32 {A.tm}, 0, {A.m}')
            add(24, fin1)
            for q in range(2):
                add(32, lambda q=q: [I(f'v_mov_b32 {A.cm[r]}, {A.tm}') for r in range(8*q, 8*q+8)])
                add(32, lambda q=q: [I(f'v_sub_f32 {A.cB[r]}, {A.mB[r]}, {A.m}') for r in range(8*q, 8*q+8)])
                add(32, lambda q=q: [I(f'v_sub_f32 {A.cA[r]}, {A.mA[r]}, {A.m}') for r in range(8*q, 8*q+8)])
            c2 = lambda jj: str(A.cB) if jj == 8 else (str(A.cA) if jj == 0 else str(A.cm))
            def vread(jj, buf, uu=uu):
                I(f's_mov_b64 exec, {A.s_vm}')
                for g in range(2):
                    I(f'ds_read_b128 {A.vf[buf][g]}, {A.av} offset:{(4*uu+jj)*1024 + g*512}')
                I('s_mov_b64 exec, -1')
                st[('v', jj)] = L.lgtok()
            add(8, lambda f=kread: (f(8, 0), f(7, 1)))
            add(16, lambda f=vread: f(8, 0))
            add(8, lambda f=smf: f(8, 0, 0, c2(8)))
            for n, jj in enumerate(order):
                sb = n & 1
                if jj > 0:
                    nb = (n + 1) & 1
                    def nxt2(jj=jj, nb=nb, n=n, kread=kread, smf=smf, vread=vread):
                        smf(jj - 1, nb, nb, c2(jj - 1))
                        if jj - 2 >= 0: kread(jj - 2, n & 1)
                        vread(jj - 1, nb)
                    add(36, nxt2)
                tag = (uu, jj) if jj < 8 else None
                for qq in range(4):
                    def ex(sb=sb, qq=qq):
                        X = A.S[sb]
                        for r in range(4 * qq, 4 * qq + 4): I(f'v_exp_f32 {X[r]}, {X[r]}')
                        if qq & 1:
                            for k in range(4): I(f'v_cvt_pk_bf16_f32 {A.P[4*(qq>>1) + k]}, {X[8*(qq>>1) + 2*k]}, {X[8*(qq>>1) + 2*k + 1]}')
                    add(48 if qq & 1 else 32, ex, tag=tag)
                add(4, lambda jj=jj: L.wait_lg(st[('v', jj)]))
                def pv(jj=jj, sb=sb, n=n):
                    for g in range(2):
                        c = '0' if (n == 0 and g == 0) else str(A.O)
                        I(f'v_mfma_f32_32x32x16_bf16 {A.O}, {A.vf[sb][g]}, {A.P.sub(4*g, 4)}, {c}')
                add(16, pv, tag=tag)
            def fin2(uu=uu):
                I(f'v_rcp_f32 {A.tm}, {A.O[8]}')
                for r in range(8): I(f'v_mul_f32 {A.O[r]}, {A.O[r]}, {A.tm}')
                self.pack_swap(A.pk, A.O.sub(0, 8), I=I)
                I(f's_add_u32 {self.s_t0}, {A.s_o}, {WO_ + uu*4096}')
                I(f'buffer_store_dwordx4 {A.pk}, {A.ao}, {self.srd["WS"]}, {self.s_t0} offen sc1')
                A.store_tok = L.vmtok()
            add(90, fin2)
        return atoms

    def emit_atoms(self, atoms):
        L = self.L; I = L.I
        k = 0
        while k < len(atoms):
            tag = atoms[k][1]
            if tag is None or not self.use_skips:
                atoms[k][2](); k += 1; continue
            e = k
            while e < len(atoms) and atoms[e][1] == tag: e += 1
            skip = self.lab('as')
            I(f's_cmp_gt_u32 {self.att.s_jmin[tag[0]]}, {tag[1]}')
            I(f's_cbranch_scc1 {skip}')
            lg0 = L.lg
            for a in atoms[k:e]: a[2]()
            assert L.lg == lg0, 'no LDS ops inside skippable regions'
            L.L(skip)
            k = e

    def L_all(self):
        L = self.L; I = L.I; cfg = self.cfg
        L.L('L_entryL')
        self.use_skips = False
        self.prof_init(L, self.lv)
        if self.cfg['prioL']: I(f's_setprio {self.cfg["prioL"]}')
        self.L_setup0()
        self.stamp(L, 'setup')
        self.L_step(-1, name='b-1')
        self.L_step(0, post=self.L_setup1)
        self.L_step(1, post=self.L_setup_g)
        setup_atoms = self.att_setup()
        per = -(-len(setup_atoms) // 6)
        for s in range(2, Q0): self.L_step(s)
        for s in range(Q0, Y0):
            self.L_step(s, atoms=self.gate_atoms(s - Q0), need_lg=True)
        la = None
        for s in range(Y0, G0):
            k = s - Y0 - 1
            at = setup_atoms[k * per:(k + 1) * per] if 0 <= k < 6 else []
            if s == self.KVS:
                assert k >= 6
                la = self.att_load_atoms(); at = [(20, None, f) for f in la]
            self.L_step(s, atoms=at, pre=self.gate_finish if s == Y0 else None, need_lg=(s == Y0), interleave=(s != self.KVS))
        KVS, A0, AE = self.KVS, self.A0, self.AE
        assert self.OFL <= G0 + cfg['o_chk'] - 1
        if la is None: la = self.att_load_atoms()
        def g_steps():
            atoms = self.att_atoms()
            total = sum(a[0] for a in atoms)
            chunks = {s: [] for s in range(A0, AE + 1)}
            acc = 0
            for a in atoms:
                chunks[A0 + min(cfg['att_len'] - 1, int(acc * cfg['att_len'] / total))].append(a); acc += a[0]
            for s in range(A0, AE + 1): self.L_step(s, atoms=chunks[s])
        for s in range(G0, A0):
            at = []; extra = None
            if s == KVS: at = [(20, None, f) for f in la]
            if s == KVS + 1: extra = lambda: self.att.load_tok
            self.L_step(s, atoms=at, extra_tok=extra, interleave=(s != KVS))
        I(f's_cmp_eq_u32 {self.s_qr}, 0')
        I('s_cbranch_scc1 L_att_q0')
        sv = (L.vm, L.vm_waited, L.lg, L.lg_waited, [it.tok for it in self.pl.items])
        nprof = (L.prof['n'], len(L.prof['names'])) if cfg.get('prof') else None
        g_steps()
        L.L('L_att_join')
        end_state = (L.vm, L.vm_waited, L.lg, L.lg_waited, [it.tok for it in self.pl.items], self.att.store_tok)
        main = L.ins; L.ins = self.Lslow.ins
        L.vm, L.vm_waited, L.lg, L.lg_waited = sv[:4]
        for it, t in zip(self.pl.items, sv[4]): it.tok = t
        if nprof: pn_end = (L.prof['n'], list(L.prof['names'])); L.prof['n'] = nprof[0]; L.prof['names'] = L.prof['names'][:nprof[1]]
        L.L('L_att_q0')
        self.use_skips = True
        g_steps()
        self.use_skips = False
        I('s_branch L_att_join')
        assert (L.vm, L.lg) == (end_state[0], end_state[2])
        L.ins = main
        L.vm, L.vm_waited, L.lg, L.lg_waited = end_state[:4]
        for it, t in zip(self.pl.items, end_state[4]): it.tok = t
        self.att.store_tok = end_state[5]
        if nprof: L.prof['n'], L.prof['names'] = pn_end
        for s in range(AE + 1, P0 + NP3 - 1):
            extra = (lambda: self.att.store_tok) if s == self.OFL else None
            self.L_step(s, extra_tok=extra)
        assert not any(self.sched.get(s) for s in range(P0 + NP3 - 1, P0 + NP3 + 1))
        self.stamp(L, 'end'); self.stamp(L, 'end_rt', real=True)
        self.prof_dump(L, self.ltmp[0], self.s_t0, 'L')
        I('s_endpgm')

    def lds(self, pat3, blk, inner):
        a = blk * BLK + inner
        win = (blk * BLK) >> 16
        return f'{pat3[win]} offset:{a - (win << 16)}'
    def windows(self, I, V, base):
        r = [base, V.alloc(1), V.alloc(1)]
        I(f'v_add_u32 {r[1]}, 0x10000, {base}')
        I(f'v_add_u32 {r[2]}, 0x20000, {base}')
        return r

    def C_flag(self, base, a, mul, b):
        I = self.C.I; t0, t1 = self.ctmp[:2]
        I(f's_mul_i32 {self.s_c0}, {a}, {mul}')
        I(f's_add_u32 {self.s_c0}, {self.s_c0}, {b}')
        I(f's_lshl_b32 {self.s_c0}, {self.s_c0}, 7')
        I(f's_add_u32 {self.s_c0}, {self.s_c0}, {base}')
        I('s_mov_b64 exec, 1')
        I(f'buffer_store_dword {self.v_nonce}, {self.v_zero}, {self.srd["WS"]}, {self.s_c0} offen sc1')
        I('s_mov_b64 exec, -1')
    def poll_issue(self, kind):
        I = self.C.I; a = self.v_pa
        if kind == 'z2n':
            I(f'v_and_b32 {a}, 31, v0'); I(f'v_lshlrev_b32 {a}, 3, {a}'); I(f'v_add_u32 {a}, {self.s_c}, {a}')
            base = F_Z2N
        elif kind == 'qkv':
            I(f's_lshl_b32 {self.s_c0}, {self.s_qr}, 2')
            I(f'v_and_b32 {a}, 7, v0'); I(f'v_add_u32 {a}, {self.s_c0}, {a}'); I(f'v_subrev_u32 {a}, 4, {a}'); I(f'v_max_i32 {a}, 0, {a}')
            I(f'v_lshlrev_b32 {a}, 3, {a}'); I(f's_lshr_b32 {self.s_c0}, {self.s_h}, 2'); I(f'v_add_u32 {a}, {self.s_c0}, {a}')
            base = F_QKV
        elif kind == 'o':
            I(f's_lshr_b32 {self.s_c0}, {self.s_tb}, 2'); I(f's_lshl_b32 {self.s_c0}, {self.s_c0}, 5')
            I(f'v_and_b32 {a}, 31, v0'); I(f'v_add_u32 {a}, {self.s_c0}, {a}')
            base = F_O
        elif kind == 'h':
            I(f's_lshl_b32 {self.s_c0}, {self.s_tb}, 3'); I(f'v_min_u32 {a}, 6, v0'); I(f'v_add_u32 {a}, {self.s_c0}, {a}')
            base = F_H
        I(f'v_lshlrev_b32 {a}, 7, {a}')
        I(f'v_add_u32 {a}, {base}, {a}')
        I(f'buffer_load_dword {self.v_pv}, {a}, {self.srd["WS"]}, 0 offen sc1')
        self.poll_tok = self.C.vmtok()
    def poll_check(self, name):
        C = self.C; I = C.I; Sl = self.Cslow
        slow = self.lab('ps'); back = self.lab('pb')
        C.wait_vm(self.poll_tok, force=True)
        I(f'v_cmp_ne_u32 vcc, {self.s_nonce}, {self.v_pv}')
        I('s_cmp_eq_u64 vcc, 0')
        I(f's_cbranch_scc0 {slow}')
        C.L(back)
        self.stamp(C, name)
        J = Sl.I
        Sl.L(slow)
        J(f's_mov_b32 {self.s_c1}, 0')
        loop = self.lab('pl')
        Sl.L(loop)
        J(f'buffer_load_dword {self.v_pv}, {self.v_pa}, {self.srd["WS"]}, 0 offen sc1')
        J('s_waitcnt vmcnt(0)')
        J(f'v_cmp_ne_u32 vcc, {self.s_nonce}, {self.v_pv}')
        J('s_cmp_eq_u64 vcc, 0')
        J(f's_cbranch_scc1 {back}')
        J(f's_add_u32 {self.s_c1}, {self.s_c1}, 1')
        J(f's_cmp_lt_u32 {self.s_c1}, {self.cfg["spin"]}')
        J(f's_cbranch_scc1 {loop}')
        J(f's_branch {back}')

    def C_setup(self):
        C = self.C; I = C.I; V = self.cv; S = self.S
        I('s_load_dword s12, s[38:39], 0')
        self.mk_srd(I, 'XA', 'WIN', 'WQKV', 'WS', 'WSN', 'WO', 'WOUT', 'BSP', 'OUT', 'WSPF')
        I('s_waitcnt lgkmcnt(0)')
        self.free_staging()
        I('s_mul_i32 s12, s12, 0x9E3779B1')
        I('s_add_u32 s12, s12, 0x7F4A7C15')
        self.s_rh = S.alloc(1); self.s_ch = S.alloc(1); self.s_c0 = S.alloc(1); self.s_c1 = S.alloc(1); self.s_c2 = S.alloc(1)
        I(f's_lshr_b32 {self.s_rh}, {self.s_w}, 1')
        I(f's_and_b32 {self.s_ch}, {self.s_w}, 1')
        t0 = V.alloc(1); t1 = V.alloc(1); t2 = V.alloc(1); t3 = V.alloc(1)
        self.ctmp = (t0, t1, t2, t3)
        self.v_t = V.alloc(1); self.v_h = V.alloc(1)
        self.v_nonce = V.alloc(1); self.v_zero = V.alloc(1); self.v_pa = V.alloc(1); self.v_pv = V.alloc(1); self.v_junk = V.alloc(1)
        I(f'v_mov_b32 {self.v_nonce}, {self.s_nonce}'); I(f'v_mov_b32 {self.v_zero}, 0')
        I(f'v_and_b32 {self.v_t}, 31, v0')
        I(f'v_lshrrev_b32 {self.v_h}, 5, v0')
        self.C_prefetch_early()
        I(f'v_lshrrev_b32 {t0}, 1, {self.v_t}')
        I(f'v_and_b32 {t0}, 7, {t0}')
        I(f'v_xor_b32 {t0}, {t0}, {self.v_h}')
        I(f'v_lshlrev_b32 {t0}, 4, {t0}')
        I(f'v_lshl_add_u32 {t0}, {self.v_t}, 7, {t0}')
        self.v_ax0 = V.alloc(1)
        I(f'v_mov_b32 {self.v_ax0}, {t0}')
        I(f's_lshl_b32 {self.s_c0}, {self.s_rh}, 12')
        I(f'v_add_u32 {t0}, {self.s_c0}, {t0}')
        self.ax = []
        for u in range(4):
            b = V.alloc(1)
            I(f'v_xor_b32 {b}, {32*u}, {t0}')
            self.ax.append(self.windows(I, V, b))
        I(f'v_lshrrev_b32 {t0}, 4, v0')
        I(f'v_and_b32 {t1}, 15, v0')
        kk = V.alloc(1); cc = V.alloc(1)
        I(f'v_lshrrev_b32 {t2}, 1, {t0}')
        I(f'v_lshlrev_b32 {t2}, 3, {t2}')
        I(f'v_lshrrev_b32 {t3}, 2, {t1}')
        I(f'v_add_u32 {kk}, {t2}, {t3}')
        I(f'v_and_b32 {t2}, 1, {t0}')
        I(f'v_lshlrev_b32 {t2}, 5, {t2}')
        I(f'v_and_b32 {t3}, 3, {t1}')
        I(f'v_lshlrev_b32 {t3}, 3, {t3}')
        I(f'v_add_u32 {cc}, {t2}, {t3}')
        self.aw128 = []
        for b in range(2):
            r = V.alloc(1)
            I(f's_lshl_b32 {self.s_c0}, {self.s_ch}, 1')
            I(f's_add_u32 {self.s_c0}, {self.s_c0}, {b}')
            I(f'v_lshrrev_b32 {t2}, 2, {t1}')
            I(f'v_xor_b32 {t2}, {self.s_c0}, {t2}')
            I(f'v_lshlrev_b32 {t2}, 6, {t2}')
            I(f'v_lshl_add_u32 {r}, {kk}, 8, {t2}')
            I(f'v_add_u32 {r}, {r}, {cc}')
            self.aw128.append(self.windows(I, V, r))
        r = V.alloc(1)
        I(f'v_lshrrev_b32 {t2}, 3, {t1}')
        I(f'v_xor_b32 {t2}, {self.s_ch}, {t2}')
        I(f'v_lshlrev_b32 {t2}, 6, {t2}')
        I(f'v_lshl_add_u32 {r}, {kk}, 7, {t2}')
        I(f'v_add_u32 {r}, {r}, {cc}')
        self.aw64 = self.windows(I, V, r)
        self.v_kk, self.v_cc = kk, cc
        self.accZ = V.alloc(32, 2); self.accY = V.alloc(32, 2); self.accQ = V.alloc(48, 2)
        self.fx = [V.alloc(4, 2) for _ in range(2)]
        self.fw = [[V.alloc(4, 2) for _ in range(3)] for _ in range(2)]
        self.k_c0 = V.alloc(2, 2); self.k_c1 = V.alloc(2, 2); self.k_one = V.alloc(2, 2)
        for k in range(2):
            I(f'v_mov_b32 {self.k_c0[k]}, {fhex(GC0)}')
            I(f'v_mov_b32 {self.k_c1[k]}, {fhex(GC1)}')
            I(f'v_mov_b32 {self.k_one[k]}, 1.0')

    def C_prefetch_early(self):
        I = self.C.I; cfg = self.cfg; t0, t1, t2, t3 = self.ctmp
        if cfg['pf_code']:
            sp = self.S.alloc(4, 4)
            I(f's_getpc_b64 {sp.sub(0,2)}')
            self.C.L('L_pc_here')
            I(f's_sub_u32 {sp[0]}, {sp[0]}, L_pc_here-{KNAME}')
            I(f's_subb_u32 {sp[1]}, {sp[1]}, 0')
            I(f's_and_b32 {sp[1]}, {sp[1]}, 0xffff')
            I(f's_mov_b32 {sp[2]}, L_code_end-{KNAME}')
            I(f's_mov_b32 {sp[3]}, 0x20000')
            I(f's_lshr_b32 {self.s_c0}, s2, 3')
            I(f's_lshl_b32 {self.s_c0}, {self.s_c0}, 2')
            I(f's_add_u32 {self.s_c0}, {self.s_c0}, {self.s_w}')
            I(f's_lshl_b32 {self.s_c0}, {self.s_c0}, 9')
            I(f'v_lshlrev_b32 {t0}, 7, v0')
            I(f'v_cmp_gt_u32 vcc, 4, v0')
            I(f'v_cndmask_b32_e64 {t0}, -1, {t0}, vcc')
            I(f'buffer_load_dword {self.v_junk}, {t0}, {sp}, {self.s_c0} offen')
            self.S.free(sp)
    def C_prefetch_w(self, which):
        I = self.C.I; t0, t1, t2, t3 = self.ctmp
        j = self.v_junk
        I(f's_and_b32 {self.s_c0}, {self.s_tb}, 7')
        I(f's_lshl_b32 {self.s_c0}, {self.s_c0}, 6')
        I(f's_lshl_b32 {self.s_c1}, {self.s_w}, 4')
        I(f's_add_u32 {self.s_c0}, {self.s_c0}, {self.s_c1}')
        I(f'v_lshrrev_b32 {t0}, 2, v0')
        I(f'v_add_u32 {t0}, {self.s_c0}, {t0}')
        if which == 'w1':
            I(f'v_mul_u32_u24 {t0}, 3584, {t0}')
            I(f'v_and_b32 {t1}, 3, v0')
            I(f'v_lshl_add_u32 {t0}, {t1}, 7, {t0}')
            I(f'v_cmp_gt_u32 vcc, 2, {t1}')
            I(f'v_cndmask_b32_e64 {t0}, -1, {t0}, vcc')
            I(f's_lshl_b32 {self.s_c1}, {self.s_c}, 8')
            I(f'buffer_load_dword {j}, {t0}, {self.srd["WIN"]}, {self.s_c1} offen')
        else:
            I(f'v_mul_u32_u24 {t0}, 3072, {t0}')
            I(f'v_and_b32 {t1}, 3, v0')
            I(f'v_lshl_add_u32 {t0}, {t1}, 10, {t0}')
            I(f'v_cmp_gt_u32 vcc, 3, {t1}')
            I(f'v_cndmask_b32_e64 {t0}, -1, {t0}, vcc')
            I(f's_lshl_b32 {self.s_c1}, {self.s_c}, 7')
            I(f'buffer_load_dword {j}, {t0}, {self.srd["WQKV"]}, {self.s_c1} offen')
    def C_prefetch_wsp(self):
        I = self.C.I; t0, t1, t2, t3 = self.ctmp
        I(f's_and_b32 {self.s_c0}, {self.s_c}, 3')
        I(f's_lshl_b32 {self.s_c0}, {self.s_c0}, 2')
        I(f's_add_u32 {self.s_c0}, {self.s_c0}, {self.s_w}')
        I(f's_lshl_b32 {self.s_c0}, {self.s_c0}, 14')
        I(f's_lshl_b32 {self.s_c1}, {self.s_tb}, 18')
        I(f's_add_u32 {self.s_c0}, {self.s_c0}, {self.s_c1}')
        I(f'v_lshlrev_b32 {t0}, 12, {self.v_h}')
        I(f'v_lshl_add_u32 {t0}, {self.v_t}, 7, {t0}')
        I(f'buffer_load_dword {self.v_junk}, {t0}, {self.srd["WSPF"]}, {self.s_c0} offen')
        I(f's_add_u32 {self.s_c0}, {self.s_c0}, 8192')
        I(f'buffer_load_dword {self.v_junk}, {t0}, {self.srd["WSPF"]}, {self.s_c0} offen')
    def C_prefetch_w3(self):
        I = self.C.I; t0, t1, t2, t3 = self.ctmp
        I(f's_and_b32 {self.s_c0}, {self.s_tb}, 7')
        I(f's_lshl_b32 {self.s_c0}, {self.s_c0}, 2')
        I(f's_add_u32 {self.s_c0}, {self.s_c0}, {self.s_w}')
        I(f's_mul_i32 {self.s_c0}, {self.s_c0}, 44')
        I(f'v_min_u32 {t0}, 43, v0')
        I(f'v_add_u32 {t0}, {self.s_c0}, {t0}')
        I(f's_lshl_b32 {self.s_c1}, {self.s_c}, 7')
        I(f'v_lshlrev_b32 {t1}, 10, {t0}')
        I(f'buffer_load_dword {self.v_junk}, {t1}, {self.srd["WO"]}, {self.s_c1} offen')
        I(f'v_subrev_u32 {t1}, {512*1024}, {t1}')
        I(f'buffer_load_dword {self.v_junk}, {t1}, {self.srd["WOUT"]}, {self.s_c1} offen')

    def gemm_phase(self, nsteps, reads, mfmas, first_reads_done=False, last_barrier=True, hooks=None, next_reads=None, U=4):
        C = self.C; I = C.I
        hooks = hooks or {}
        def run(key):
            for f in hooks.get(key, []): f()
        buf = self.buf
        if not first_reads_done:
            reads(0, 0, buf); self.rd_tok = C.lgtok()
        for j in range(nsteps):
            for u in range(U):
                cur_tok = self.rd_tok
                if u < U - 1:
                    reads(j, u + 1, buf ^ 1); nxt = C.lgtok()
                    C.wait_lg(cur_tok)
                else:
                    C.wait_lg(cur_tok)
                    run(('pre', j))
                    if last_barrier or j < nsteps - 1: I('s_barrier')
                    run(('post', j))
                    if j < nsteps - 1: reads(j + 1, 0, buf ^ 1)
                    elif next_reads is not None: next_reads(buf ^ 1)
                    nxt = C.lgtok()
                mfmas(j, u, buf)
                run(('mf', j, u))
                buf ^= 1
                self.rd_tok = nxt
        self.buf = buf

    def zy_reads(self, wname):
        def reads(j, u, buf):
            I = self.C.I
            I(f'ds_read_b128 {self.fx[buf]}, {self.lds(self.ax[u], self.it[f"XB{j}"].blk, 0)}')
            wb = self.it[f'{wname}_{j}_{u >> 1}'].blk
            for b in range(2):
                for t in range(2):
                    I(f'ds_read_b64_tr_b16 {self.fw[buf][b].sub(2*t, 2)}, {self.lds(self.aw128[b], wb, (u & 1) * 4096 + t * 1024)}')
        return reads
    def zy_mfmas(self, acc):
        def mf(j, u, buf):
            for b in range(2):
                d = acc.sub(16 * b, 16)
                c = '0' if (j == 0 and u == 0) else str(d)
                self.C.I(f'v_mfma_f32_32x32x16_bf16 {d}, {self.fw[buf][b]}, {self.fx[buf]}, {c}')
        return mf
    def q_reads(self, j, u, buf):
        I = self.C.I
        I(f'ds_read_b128 {self.fx[buf]}, {self.lds(self.ax[u], self.it[f"XB{j}"].blk, 0)}')
        for m, nm in enumerate('qkv'):
            wb = self.it[f'W{nm}{j}'].blk
            for t in range(2):
                I(f'ds_read_b64_tr_b16 {self.fw[buf][m].sub(2*t, 2)}, {self.lds(self.aw64, wb, u * 2048 + t * 512)}')
    def q_mfmas(self, j, u, buf):
        for m in range(3):
            d = self.accQ.sub(16 * m, 16)
            c = '0' if (j == 0 and u == 0) else str(d)
            if m < 2: self.C.I(f'v_mfma_f32_32x32x16_bf16 {d}, {self.fw[buf][m]}, {self.fx[buf]}, {c}')
            else:     self.C.I(f'v_mfma_f32_32x32x16_bf16 {d}, {self.fx[buf]}, {self.fw[buf][m]}, {c}')

    def gelu_pk(self, acc, n, tmp):
        I = self.C.I
        c0, c1, one = self.k_c0, self.k_c1, self.k_one
        G = 4
        for g0 in range(0, n // 2, G):
            ps = list(range(g0, min(g0 + G, n // 2)))
            X = lambda p: acc.sub(2 * p, 2)
            T = lambda p: tmp.sub(2 * (p - g0), 2)
            for p in ps: I(f'v_pk_mul_f32 {T(p)}, {X(p)}, {X(p)}')
            for p in ps: I(f'v_pk_fma_f32 {T(p)}, {T(p)}, {c1}, {c0}')
            for p in ps: I(f'v_pk_mul_f32 {T(p)}, {T(p)}, {X(p)}')
            for p in ps:
                I(f'v_exp_f32 {T(p)[0]}, {T(p)[0]}'); I(f'v_exp_f32 {T(p)[1]}, {T(p)[1]}')
            for p in ps: I(f'v_pk_add_f32 {T(p)}, {T(p)}, {one}')
            for p in ps:
                I(f'v_rcp_f32 {T(p)[0]}, {T(p)[0]}'); I(f'v_rcp_f32 {T(p)[1]}, {T(p)[1]}')
            for p in ps: I(f'v_pk_mul_f32 {X(p)}, {X(p)}, {T(p)}')

    def xhalf_sum(self, x, tmp):
        I = self.C.I
        I(f'v_mov_b32 {tmp}, {x}')
        I(f'v_permlane32_swap_b32 {tmp}, {x}')
        I(f'v_add_f32 {x}, {x}, {tmp}')

    def pack_swap(self, o, src, swap=True, I=None):
        I = I or self.C.I
        for k in range(4):
            I(f'v_cvt_pk_bf16_f32 {o[k]}, {src[2*k]}, {src[2*k+1]}')
        if swap:
            I(f'v_permlane32_swap_b32 {o[0]}, {o[2]}')
            I(f'v_permlane32_swap_b32 {o[1]}, {o[3]}')

    def z2_epilogue(self):
        C = self.C; I = C.I; V = self.cv
        tmp = V.alloc(8, 2)
        self.gelu_pk(self.accZ, 32, tmp)
        a1 = tmp.sub(0, 2); a2 = tmp.sub(2, 2)
        I(f'v_pk_add_f32 {a1}, {self.accZ.sub(0,2)}, {self.accZ.sub(2,2)}')
        I(f'v_pk_mul_f32 {a2}, {self.accZ.sub(0,2)}, {self.accZ.sub(0,2)}')
        I(f'v_pk_fma_f32 {a2}, {self.accZ.sub(2,2)}, {self.accZ.sub(2,2)}, {a2}')
        for p in range(2, 16):
            x = self.accZ.sub(2 * p, 2)
            I(f'v_pk_add_f32 {a1}, {a1}, {x}')
            I(f'v_pk_fma_f32 {a2}, {x}, {x}, {a2}')
        g = V.alloc(4, 4)
        I(f'v_add_f32 {g[0]}, {a1[0]}, {a1[1]}')
        I(f'v_add_f32 {g[1]}, {a2[0]}, {a2[1]}')
        self.xhalf_sum(g[0], tmp[4]); self.xhalf_sum(g[1], tmp[5])
        I(f'v_mov_b32 {g[2]}, {self.s_nonce}')
        I(f'v_mov_b32 {g[3]}, 0')
        I(f's_mul_i32 {self.s_c0}, {self.s_tb}, 14')
        I(f's_lshl_b32 {self.s_c1}, {self.s_c}, 1')
        I(f's_add_u32 {self.s_c0}, {self.s_c0}, {self.s_c1}')
        I(f's_add_u32 {self.s_c0}, {self.s_c0}, {self.s_ch}')
        I(f's_lshl_b32 {self.s_c0}, {self.s_c0}, 1')
        I(f's_add_u32 {self.s_c0}, {self.s_c0}, {self.s_rh}')
        I(f's_lshl_b32 {self.s_c0}, {self.s_c0}, 9')
        I(f's_add_u32 {self.s_c0}, {self.s_c0}, {STATS}')
        I(f'v_lshlrev_b32 {tmp[6]}, 4, {self.v_t}')
        I('s_mov_b32 exec_hi, 0')
        I(f'buffer_store_dwordx4 {g}, {tmp[6]}, {self.srd["WSN"]}, {self.s_c0} offen sc1')
        I('s_mov_b32 exec_hi, -1')
        V.free(tmp); self._g = g

    def stats_issue(self):
        C = self.C; I = C.I; V = self.cv
        self.sg = V.alloc(28, 4); self.v_sa = V.alloc(1)
        self.s_sa0 = self.S.alloc(1); self.s_sa1 = self.S.alloc(1)
        t0 = self.ctmp[0]
        I(f'v_mul_u32_u24 {t0}, {7*1024}, {self.v_h}')
        I(f'v_lshl_add_u32 {self.v_sa}, {self.v_t}, 4, {t0}')
        I(f's_mul_i32 {self.s_sa0}, {self.s_tb}, 14336')
        I(f's_lshl_b32 {self.s_sa1}, {self.s_rh}, 9')
        I(f's_add_u32 {self.s_sa0}, {self.s_sa0}, {self.s_sa1}')
        I(f's_add_u32 {self.s_sa0}, {self.s_sa0}, {STATS}')
        I(f's_add_u32 {self.s_sa1}, {self.s_sa0}, 4096')
        self.stats_loads(I)
    def stats_loads(self, I):
        for i in range(7):
            so = self.s_sa0 if i < 4 else self.s_sa1
            I(f'buffer_load_dwordx4 {self.sg.sub(4*i,4)}, {self.v_sa}, {self.srd["WS"]}, {so} offen offset:{(i % 4) * 1024} sc1')

    def ln_finalize(self):
        C = self.C; I = C.I; V = self.cv; S = self.S; Sl = self.Cslow; J = Sl.I
        t0, t1, t2, t3 = self.ctmp
        def check(E):
            E('s_waitcnt vmcnt(0)')
            E(f'v_xor_b32 {t0}, {self.s_nonce}, {self.sg[2]}')
            for i in range(1, 7):
                E(f'v_xor_b32 {t1}, {self.s_nonce}, {self.sg[4*i+2]}')
                E(f'v_or_b32 {t0}, {t0}, {t1}')
            E(f'v_cmp_ne_u32 vcc, 0, {t0}')
            E('s_cmp_eq_u64 vcc, 0')
        slow = self.lab('ss'); back = self.lab('sb'); loop = self.lab('sl')
        check(I)
        I(f's_cbranch_scc0 {slow}')
        C.L(back)
        C.reset_vm()
        Sl.L(slow)
        J(f's_mov_b32 {self.s_c1}, 0')
        Sl.L(loop)
        self.stats_loads(J)
        check(J)
        J(f's_cbranch_scc1 {back}')
        J(f's_add_u32 {self.s_c1}, {self.s_c1}, 1')
        J(f's_cmp_lt_u32 {self.s_c1}, {self.cfg["spin"]}')
        J(f's_cbranch_scc1 {loop}')
        J(f's_branch {back}')
        self.stamp(C, 'stats_ok')
        I(f'v_add_f32 {t0}, {self.sg[0]}, {self.sg[4]}')
        I(f'v_add_f32 {t1}, {self.sg[1]}, {self.sg[5]}')
        for i in range(2, 7):
            I(f'v_add_f32 {t0}, {t0}, {self.sg[4*i]}')
            I(f'v_add_f32 {t1}, {t1}, {self.sg[4*i+1]}')
        self.xhalf_sum(t0, t2); self.xhalf_sum(t1, t3)
        I(f'v_mul_f32 {t0}, {fhex(1/896)}, {t0}')
        I(f'v_mul_f32 {t1}, {fhex(1/896)}, {t1}')
        I(f'v_fma_f32 {t1}, -{t0}, {t0}, {t1}')
        I(f'v_max_f32 {t1}, 0, {t1}')
        I(f'v_add_f32 {t1}, {fhex(1e-5)}, {t1}')
        I(f'v_rsq_f32 {t1}, {t1}')
        I(f'v_mul_f32 {t0}, {t0}, {t1}')
        pk = self.sg
        vz = [t2, t3]
        I(f'v_lshlrev_b32 {t2}, 5, {self.v_t}')
        I(f'v_lshl_add_u32 {t2}, {self.v_h}, 4, {t2}')
        I(f'v_xor_b32 {t3}, 128, {t2}')
        s_a = [S.alloc(1), S.alloc(1)]
        I(f's_lshl_b32 {s_a[0]}, {self.s_c}, 5')
        I(f's_add_u32 {s_a[0]}, {s_a[0]}, {self.s_tb}')
        I(f's_lshl_b32 {s_a[0]}, {s_a[0]}, 14')
        I(f's_lshl_b32 {s_a[1]}, {self.s_ch}, 13')
        I(f's_add_u32 {s_a[0]}, {s_a[0]}, {s_a[1]}')
        I(f's_lshl_b32 {s_a[1]}, {self.s_rh}, 10')
        I(f's_add_u32 {s_a[0]}, {s_a[0]}, {s_a[1]}')
        I(f's_add_u32 {s_a[0]}, {s_a[0]}, {WZ2N}')
        I(f's_add_u32 {s_a[1]}, {s_a[0]}, 4096')
        for b in range(2):
            for qp in range(2):
                for r in range(16 * b + 8 * qp, 16 * b + 8 * qp + 8):
                    I(f'v_fma_f32 {self.accZ[r]}, {self.accZ[r]}, {t1}, -{t0}')
                o = pk.sub(4 * (2 * b + qp), 4)
                self.pack_swap(o, self.accZ.sub(16 * b + 8 * qp, 8))
                I(f'buffer_store_dwordx4 {o}, {vz[qp]}, {self.srd["WSN"]}, {s_a[b]} offen offset:{qp*2048} sc1')
        S.free(s_a[0], s_a[1]); V.free(self.v_sa); S.free(self.s_sa0, self.s_sa1)

    def q_epilogue(self):
        C = self.C; I = C.I; V = self.cv; S = self.S
        t0, t1, t2, t3 = self.ctmp
        pk = V.alloc(24, 4)
        s_a = [S.alloc(1) for _ in range(3)]
        I(f's_lshl_b32 {s_a[0]}, {self.s_c}, 1')
        I(f's_add_u32 {s_a[0]}, {s_a[0]}, {self.s_ch}')
        I(f's_lshl_b32 {s_a[0]}, {s_a[0]}, 17')
        I(f's_lshl_b32 {s_a[1]}, {self.s_tb}, 11')
        I(f's_add_u32 {s_a[0]}, {s_a[0]}, {s_a[1]}')
        I(f's_lshl_b32 {s_a[1]}, {self.s_rh}, 10')
        I(f's_add_u32 {s_a[0]}, {s_a[0]}, {s_a[1]}')
        I(f'v_lshlrev_b32 {t0}, 5, {self.v_t}')
        I(f'v_lshl_add_u32 {t0}, {self.v_h}, 4, {t0}')
        I(f'v_lshrrev_b32 {t1}, 3, {self.v_t}')
        I(f'v_and_b32 {t1}, 1, {t1}')
        I(f'v_lshlrev_b32 {t1}, 4, {t1}')
        I(f'v_xor_b32 {t1}, {t1}, {t0}')
        I(f'v_and_b32 {t2}, 15, {self.v_t}')
        I(f'v_lshrrev_b32 {t3}, 3, {t2}')
        I(f'v_xor_b32 {t3}, {t3}, {self.v_h}')
        I(f'v_lshlrev_b32 {t3}, 4, {t3}')
        I(f'v_lshl_add_u32 {t3}, {t2}, 5, {t3}')
        I(f'v_lshrrev_b32 {t2}, 4, {self.v_t}')
        I(f'v_lshl_add_u32 {t2}, {t2}, 16, {t3}')
        for hh in range(2):
            o = pk.sub(8 + 4 * hh, 4)
            self.pack_swap(o, self.accQ.sub(16 + 8 * hh, 8))
            I(f's_add_u32 {s_a[1]}, {s_a[0]}, {WK + hh*65536}')
            I(f'buffer_store_dwordx4 {o}, {t1}, {self.srd["WS"]}, {s_a[1]} offen sc1')
        I(f's_add_u32 {s_a[2]}, {s_a[0]}, {WVT}')
        for gq in range(2):
            o = pk.sub(16 + 4 * gq, 4)
            self.pack_swap(o, self.accQ.sub(32 + 8 * gq, 8), swap=False)
            I(f'buffer_store_dwordx4 {o}, {t2}, {self.srd["WS"]}, {s_a[2]} offen offset:{gq*512} sc1')
        for r in range(16):
            I(f'v_mul_f32 {self.accQ[r]}, {fhex(QS)}, {self.accQ[r]}')
        for hh in range(2):
            o = pk.sub(4 * hh, 4)
            self.pack_swap(o, self.accQ.sub(8 * hh, 8))
            I(f's_add_u32 {s_a[1]}, {s_a[0]}, {WQ + hh*65536}')
            I(f'buffer_store_dwordx4 {o}, {t0}, {self.srd["WS"]}, {s_a[1]} offen sc1')
        for r in s_a: S.free(r)
        V.free(pk)

    def C_p1(self):
        C = self.C; I = C.I; cfg = self.cfg
        self.prof_init(C, self.cv)
        if cfg['prioC']: I(f's_setprio {cfg["prioC"]}')
        self.C_setup()
        self.stamp(C, 'setup')
        self.buf = 0
        I('s_barrier')
        hooks = {}
        if cfg['pf_w']:
            hooks[('mf', cfg['pf_w_step'], 0)] = [lambda: self.C_prefetch_w('w1')]
            hooks[('mf', cfg['pf_w_step'] + 2, 0)] = [lambda: self.C_prefetch_w('qkv')]
        self.gemm_phase(8, self.zy_reads('W2'), self.zy_mfmas(self.accZ), hooks=hooks, next_reads=lambda buf: self.q_reads(0, 0, buf))
        self.stamp(C, 'z_done')
        self.z2_epilogue()
        self.stamp(C, 'z_epi')
        hooks = {}
        def H(key, f): hooks.setdefault(key, []).append(f)
        H(('mf', cfg['st_step'], 0), self.stats_issue)
        H(('mf', cfg['ln_step'], 3), lambda: (self.ln_finalize(), self.stamp(C, 'ln_fin')))
        H(('pre', cfg['ln_step'] + 2), lambda: C.wait_vm(C.vmtok(), force=True))
        H(('post', cfg['ln_step'] + 2), lambda: self.C_flag(F_Z2N, self.s_tb, 8, self.s_c))
        if cfg['pf_wsp']: H(('mf', cfg['pf_wsp_step'], 1), self.C_prefetch_wsp)
        self.gemm_phase(8, self.q_reads, self.q_mfmas, first_reads_done=True, hooks=hooks,
                        next_reads=lambda buf: self.zy_reads('W1')(0, 0, buf))
        self.stamp(C, 'q_done')
        self.q_epilogue()
        self.q_store_tok = C.vmtok()
        self.stamp(C, 'q_epi')
        hooks = {}
        H(('pre', 1), lambda: C.wait_vm(self.q_store_tok, force=True))
        H(('post', 1), lambda: self.C_flag(F_QKV, self.s_tb, 8, self.s_c))
        H(('mf', 1, 1), lambda: (self.C_setup_g(), self.C_setup_p3()))
        H(('mf', cfg['z_chk'] - 1, 2), lambda: self.poll_issue('z2n'))
        H(('pre', cfg['z_chk']), lambda: self.poll_check('z2n_ok'))
        kc = cfg['kv_chk']
        if kc < 0:
            H(('mf', 8 + kc - 1, 3), lambda: self.poll_issue('qkv'))
            H(('pre', 8 + kc), lambda: self.poll_check('qkv_ok'))
        if kc == 0: H(('mf', 7, 2), lambda: self.poll_issue('qkv'))
        self.gemm_phase(8, self.zy_reads('W1'), self.zy_mfmas(self.accY), first_reads_done=True, hooks=hooks,
                        next_reads=lambda buf: self.g_reads(0, 0, buf))
        self.stamp(C, 'y_done')

    def C_setup_g(self):
        C = self.C; I = C.I; V = self.cv
        t0, t1, t2, t3 = self.ctmp
        V.free(self.accZ, self.sg, self._g, self.accQ)
        self.az = []
        I(f'v_lshrrev_b32 {t0}, 4, v0')
        I(f'v_and_b32 {t0}, 1, {t0}')
        I(f'v_and_b32 {t1}, 3, v0')
        I(f'v_lshlrev_b32 {t1}, 3, {t1}')
        I(f'v_lshl_add_u32 {t1}, {t0}, 11, {t1}')
        I(f's_lshl_b32 {self.s_c0}, {self.s_ch}, 13')
        I(f'v_add_u32 {t1}, {self.s_c0}, {t1}')
        for t in range(2):
            r = V.alloc(1)
            I(f'v_xor_b32 {t2}, {t}, {t0}')
            I(f'v_lshlrev_b32 {t2}, 2, {t2}')
            I(f'v_add_u32 {t2}, {t2}, {self.v_kk}')
            I(f'v_lshl_add_u32 {r}, {t2}, 5, {t1}')
            self.az.append(self.windows(I, V, r))
        self.accG = V.alloc(32, 2)
        self.g_tmp = V.alloc(1); self.v_bsp = V.alloc(1)

    def g_reads(self, j, u, buf):
        I = self.C.I
        wb = self.it[f'WS{j}'].blk; zb = self.it[f'Z{j}_0'].blk
        assert self.it[f'Z{j}_1'].blk == zb + 1
        I(f'ds_read_b128 {self.fx[buf]}, {self.lds(self.ax[u], wb, 0)}')
        for b in range(2):
            for t in range(2):
                I(f'ds_read_b64_tr_b16 {self.fw[buf][b].sub(2*t, 2)}, {self.lds(self.az[t], zb, b * 4096 + u * 512)}')
    def g_mfmas(self, j, u, buf):
        for b in range(2):
            d = self.accG.sub(16 * b, 16)
            c = '0' if (j == 0 and u == 0) else str(d)
            self.C.I(f'v_mfma_f32_32x32x16_bf16 {d}, {self.fw[buf][b]}, {self.fx[buf]}, {c}')
    def gelu_one(self, r, part):
        I = self.C.I; x = self.accY[r]; t = self.g_tmp
        if part == 0:
            I(f'v_mul_f32 {t}, {x}, {x}')
            I(f'v_fma_f32 {t}, {t}, {self.k_c1[0]}, {self.k_c0[0]}')
            I(f'v_mul_f32 {t}, {t}, {x}')
            I(f'v_exp_f32 {t}, {t}')
        else:
            I(f'v_add_f32 {t}, 1.0, {t}')
            I(f'v_rcp_f32 {t}, {t}')
            I(f's_nop 0')
            I(f'v_mul_f32 {x}, {x}, {t}')

    def bsp_load(self):
        I = self.C.I; t0 = self.ctmp[0]
        I(f's_lshl_b32 {self.s_c0}, {self.s_tb}, 7')
        I(f's_lshl_b32 {self.s_c1}, {self.s_rh}, 6')
        I(f's_add_u32 {self.s_c0}, {self.s_c0}, {self.s_c1}')
        I(f'v_lshlrev_b32 {t0}, 1, {self.v_t}')
        I(f'buffer_load_ushort {self.v_bsp}, {t0}, {self.srd["BSP"]}, {self.s_c0} offen')

    def nonce_update(self):
        C = self.C; I = C.I; Sl = self.Cslow; J = Sl.I
        t0, t1, t2, t3 = self.ctmp
        go = self.lab('nu'); back = self.lab('nb'); loop = self.lab('nl')
        I(f's_lshl_b32 {self.s_c0}, {self.s_tb}, 3')
        I(f's_add_u32 {self.s_c0}, {self.s_c0}, {self.s_c}')
        I(f's_lshl_b32 {self.s_c0}, {self.s_c0}, 2')
        I(f's_add_u32 {self.s_c0}, {self.s_c0}, {self.s_w}')
        I(f's_cmp_eq_u32 {self.s_c0}, 28')
        I(f's_cbranch_scc1 {go}')
        C.L(back)
        Sl.L(go)
        J(f's_mov_b32 {self.s_c1}, 0')
        Sl.L(loop)
        for k in range(4):
            J(f'v_add_u32 {t0}, {64*k}, v0')
            J(f'v_lshlrev_b32 {t0}, 7, {t0}')
            J(f'v_add_u32 {t0}, {F_QKV}, {t0}')
            J(f'buffer_load_dword {self.sgn[k]}, {t0}, {self.srd["WS"]}, 0 offen sc1')
        J('s_waitcnt vmcnt(0)')
        J(f'v_xor_b32 {t0}, {self.s_nonce}, {self.sgn[0]}')
        for k in range(1, 4):
            J(f'v_xor_b32 {t1}, {self.s_nonce}, {self.sgn[k]}')
            J(f'v_or_b32 {t0}, {t0}, {t1}')
        J(f'v_cmp_ne_u32 vcc, 0, {t0}')
        J('s_cmp_eq_u64 vcc, 0')
        upd = self.lab('nw')
        J(f's_cbranch_scc1 {upd}')
        J(f's_add_u32 {self.s_c1}, {self.s_c1}, 1')
        J(f's_cmp_lt_u32 {self.s_c1}, {self.cfg["spin"]}')
        J(f's_cbranch_scc1 {loop}')
        Sl.L(upd)
        J('s_mov_b64 exec, 1')
        J(f'buffer_store_dword {self.v_nonce}, {self.v_zero}, {self.srd["WS"]}, 0 offen sc1')
        J('s_mov_b64 exec, -1')
        J(f's_branch {back}')

    def C_g(self):
        C = self.C; I = C.I; V = self.cv; S = self.S; cfg = self.cfg
        t0, t1, t2, t3 = self.ctmp
        hooks = {}
        def H(key, f): hooks.setdefault(key, []).append(f)
        for j in range(32):
            H(('mf', j, 0), lambda j=j: self.gelu_one(j, 0)); H(('mf', j, 2), lambda j=j: self.gelu_one(j, 1))
        H(('mf', 2, 1), self.bsp_load)
        if cfg['pf_w3']: H(('mf', 2, 3), self.C_prefetch_w3)
        kc = cfg['kv_chk']
        if kc > 0: H(('mf', kc - 1, 3), lambda: self.poll_issue('qkv'))
        if kc >= 0: H(('pre', kc), lambda: self.poll_check('qkv_ok'))
        H(('post', self.OFL - G0), lambda: self.C_flag(F_O, self.s_qr, 32, self.s_h))
        oc = cfg['o_chk']
        H(('mf', oc - 1, 3), lambda: self.poll_issue('o'))
        H(('pre', oc), lambda: self.poll_check('o_ok'))
        self.gemm_phase(32, self.g_reads, self.g_mfmas, first_reads_done=True, hooks=hooks,
                        next_reads=lambda buf: self.p3_reads(0, 0, buf))
        self.stamp(C, 'g_done')
        s_a = [S.alloc(1), S.alloc(1)]
        I(f's_mul_i32 {s_a[0]}, {self.s_tb}, 114688')
        I(f's_lshl_b32 {s_a[1]}, {self.s_c}, 1')
        I(f's_add_u32 {s_a[1]}, {s_a[1]}, {self.s_ch}')
        I(f's_lshl_b32 {s_a[1]}, {s_a[1]}, 13')
        I(f's_add_u32 {s_a[0]}, {s_a[0]}, {s_a[1]}')
        I(f's_lshl_b32 {s_a[1]}, {self.s_rh}, 10')
        I(f's_add_u32 {s_a[0]}, {s_a[0]}, {s_a[1]}')
        I(f's_add_u32 {s_a[0]}, {s_a[0]}, {WH}')
        I(f's_add_u32 {s_a[1]}, {s_a[0]}, 4096')
        I(f'v_lshrrev_b32 {t0}, 3, {self.v_t}')
        I(f'v_and_b32 {t0}, 1, {t0}')
        I(f'v_xor_b32 {t0}, {t0}, {self.v_h}')
        I(f'v_lshlrev_b32 {t0}, 4, {t0}')
        I(f'v_lshl_add_u32 {t0}, {self.v_t}, 5, {t0}')
        I(f'v_lshlrev_b32 {self.v_bsp}, 16, {self.v_bsp}')
        pk = V.alloc(16, 4)
        for b in range(2):
            a = self.accG.sub(16 * b, 16)
            for qp in range(2):
                for r in range(8 * qp, 8 * qp + 8):
                    I(f'v_add_f32 {a[r]}, {a[r]}, {self.v_bsp}')
                    I(f'v_mul_f32 {a[r]}, {a[r]}, {self.accY[16*b + r]}')
                o = pk.sub(4 * (2 * b + qp), 4)
                self.pack_swap(o, a.sub(8 * qp, 8))
                I(f'buffer_store_dwordx4 {o}, {t0}, {self.srd["WSN"]}, {s_a[b]} offen offset:{qp*2048} sc1')
        self.h_tok = C.vmtok()
        self.stamp(C, 'h_issued')
        S.free(*s_a)

    def C_setup_p3(self):
        C = self.C; I = C.I; V = self.cv
        t0 = self.ctmp[0]
        r = V.alloc(1)
        I(f'v_lshrrev_b32 {t0}, 3, {self.v_t}')
        I(f'v_and_b32 {t0}, 1, {t0}')
        I(f'v_xor_b32 {t0}, {t0}, {self.v_h}')
        I(f'v_lshlrev_b32 {t0}, 4, {t0}')
        I(f'v_lshl_add_u32 {t0}, {self.v_t}, 5, {t0}')
        I(f's_lshl_b32 {self.s_c0}, {self.s_rh}, 10')
        I(f'v_add_u32 {r}, {self.s_c0}, {t0}')
        self.ah = self.windows(I, V, r)
    def p3_reads(self, j, u, buf):
        I = self.C.I
        I(f'ds_read_b128 {self.fx[buf]}, {self.lds(self.ah, self.it[f"A{j}"].blk, u * 2048)}')
        for t in range(2):
            I(f'ds_read_b64_tr_b16 {self.fw[buf][0].sub(2*t, 2)}, {self.lds(self.aw64, self.it[f"W3_{j}"].blk, u * 2048 + t * 512)}')

    def C_p3(self):
        C = self.C; I = C.I; V = self.cv; S = self.S; cfg = self.cfg
        t0, t1, t2, t3 = self.ctmp
        accA = V.alloc(16, 2); accB = V.alloc(16, 2)
        vg = V.alloc(1); self.sgn = V.alloc(4, 1)
        def mf(j, u, buf):
            d = accA if j < 8 else accB
            c = '0' if (u == 0 and j in (0, 8)) else str(d)
            I(f'v_mfma_f32_32x32x16_bf16 {d}, {self.fw[buf][0]}, {self.fx[buf]}, {c}')
        def gate_read():
            I(f's_lshl_b32 {self.s_c0}, {self.s_rh}, 7')
            I(f's_add_u32 {self.s_c0}, {self.s_c0}, {M_GATE}')
            I(f'v_lshl_add_u32 {t1}, {self.v_t}, 2, {self.s_c0}')
            I(f'ds_read_b32 {vg}, {t1}')
        hc = cfg['h_chk']; hd = cfg['h_drain']
        hooks = {}
        def H(key, f): hooks.setdefault(key, []).append(f)
        H(('pre', hd), lambda: C.wait_vm(self.h_tok, force=True))
        H(('post', hd), lambda: self.C_flag(F_H, self.s_tb, 8, self.s_c))
        H(('mf', hc - 1, 3), lambda: self.poll_issue('h'))
        H(('pre', hc), lambda: self.poll_check('h_ok'))
        H(('mf', hc + 1, 0), self.nonce_update)
        H(('post', 10), gate_read)
        self.gemm_phase(NP3, self.p3_reads, mf, first_reads_done=True, last_barrier=False, hooks=hooks)
        self.stamp(C, 'p3_done')
        s_a = S.alloc(1); s_b = S.alloc(1)
        I(f's_lshl_b32 {s_a}, {self.s_tb}, 16')
        I(f's_lshl_b32 {s_b}, {self.s_rh}, 15')
        I(f's_add_u32 {s_a}, {s_a}, {s_b}')
        I(f's_lshl_b32 {s_b}, {self.s_c}, 7')
        I(f's_add_u32 {s_a}, {s_a}, {s_b}')
        I(f's_lshl_b32 {s_b}, {self.s_ch}, 6')
        I(f's_add_u32 {s_a}, {s_a}, {s_b}')
        I(f'v_lshlrev_b32 {t0}, 10, {self.v_t}')
        I(f'v_lshl_add_u32 {t0}, {self.v_h}, 4, {t0}')
        pk = V.alloc(8, 4)
        for qp in range(2):
            for r_ in range(8 * qp, 8 * qp + 8):
                I(f'v_sub_f32 {accA[r_]}, {accA[r_]}, {accB[r_]}')
                I(f'v_fma_f32 {accB[r_]}, {vg}, {accA[r_]}, {accB[r_]}')
            o = pk.sub(4 * qp, 4)
            self.pack_swap(o, accB.sub(8 * qp, 8))
            I(f'buffer_store_dwordx4 {o}, {t0}, {self.srd["OUT"]}, {s_a} offen offset:{qp*32}')
        self.stamp(C, 'end'); self.stamp(C, 'end_rt', real=True)
        self.prof_dump(C, self.ctmp[0], self.s_c0, 'C')
        I('s_endpgm')

    def build(self):
        self.prologue()
        self.make_plan()
        self.S = self.SL
        self.L_all()
        self.S = self.SC
        self.C_p1(); self.C_g(); self.C_p3()
        allins = self.pre.ins + self.C.ins + self.Cslow.ins + self.L.ins + self.Lslow.ins + [Ins('L_exit:'), Ins('s_endpgm'), Ins('L_code_end:')]
        n = fix_hazards_fast(allins)
        body = Stream(); body.ins = allins
        txt = f"""; Fused gated-mix kernel: QKV / gMLP projections, sliding-window attention, spatial gating and output projection
; @launch grid=(256,1,1) block=(512,1,1) lds={LDS_BYTES}
.amdgcn_target "amdgcn-amd-amdhsa--gfx950"
.text
.globl {KNAME}
.p2align 8
.type {KNAME},@function
{KNAME}:
{body.text()}
.section .rodata,"a"
.p2align 6
.amdhsa_kernel {KNAME}
  .amdhsa_next_free_vgpr 256
  .amdhsa_next_free_sgpr 102
  .amdhsa_accum_offset 256
  .amdhsa_group_segment_fixed_size 0
  .amdhsa_kernarg_size 96
  .amdhsa_user_sgpr_count 2
  .amdhsa_user_sgpr_kernarg_segment_ptr 1
  .amdhsa_system_sgpr_workgroup_id_x 1
.end_amdhsa_kernel
"""
        sys.stderr.write(f'instructions: {len(allins)}  nops inserted: {n}  vgpr C {self.cv.maxused+1} L {self.lv.maxused+1} sgpr {max(self.SL.maxused, self.SC.maxused)+1}\n')
        return txt

if __name__ == '__main__':
    import argparse
    ap = argparse.ArgumentParser()
    ap.add_argument('--prof', action='store_true'); ap.add_argument('--cfg', default='')
    ap.add_argument('-o', default='out.s')
    a = ap.parse_args()
    cfg = {k: float(v) if '.' in v else int(v) for k, v in (kv.split('=') for kv in a.cfg.split(',') if kv)}
    if a.prof: cfg.setdefault('prof', 1)
    g = Gen(**cfg)
    open(a.o, 'w').write(g.build())
    if a.prof: json.dump(g.prof_names, open(a.o + '.names.json', 'w'))
```
